```python
import torch

def _softmax(x, axis=-1):
    return torch.softmax(x, dim=axis)
def _gelu(x):
    return torch.nn.functional.gelu(x, approximate="tanh")
def _silu(x):
    return torch.nn.functional.silu(x)
def _sigmoid(x):
    return torch.sigmoid(x)
def _layernorm(x, axis=-1, eps=1e-5):
    m = x.mean(dim=axis, keepdim=True)
    v = x.var(dim=axis, keepdim=True, unbiased=False)
    return (x - m) / torch.sqrt(v + eps)
def _scatter_add(tgt, idx, src, axis=0):
    return tgt.clone().index_add_(axis, idx, src)
def _segment_sum(src, seg, n):
    out = torch.zeros((n,) + src.shape[1:], dtype=src.dtype)
    return out.index_add_(0, seg, src)
def _pad(x, pw):
    flat = tuple(v for pair in reversed(pw) for v in pair)
    return torch.nn.functional.pad(x, flat)

kernel_name = 'concat_heads__gqa_block_cached__mha_block_cached__near_ridge'

def setup_inputs():

    _w = (lambda a: (lambda t: t.to(torch.bfloat16) if t.is_floating_point() else t)(torch.as_tensor(a)))
    def _A_setup():
        B, Sq, D = 16, 160, 640
        Hq, Hkv, Sk, Dh = 32, 32, 512, 192
        assert Hq % Hkv == 0, (Hq, Hkv)
        return {
            "x": _w((lambda *s: torch.randn(*s, dtype=torch.bfloat16) * 0.8)(B, Sq, D)),
            "k_cache": _w((lambda *s: torch.randn(*s, dtype=torch.bfloat16) * 0.8)(B, Hkv, Sk, Dh)),
            "v_cache": _w((lambda *s: torch.randn(*s, dtype=torch.bfloat16) * 0.05)(B, Hkv, Sk, Dh)),
            "wq": _w((lambda *s: torch.randn(*s, dtype=torch.bfloat16) * 0.8)(D, Hq * Dh) * (D ** -0.5)),
            "wo": _w((lambda *s: torch.randn(*s, dtype=torch.bfloat16) * 0.05)(Hq * Dh, D) * ((Hq * Dh) ** -0.5)),
        }
    _A_in = _A_setup()

    def _B_setup():
        B, Sq, D = 16, 160, 640
        H, Sk, Dh = 32, 512, 192
        return {
            "x": _w((lambda *s: torch.randn(*s, dtype=torch.bfloat16) * 0.8)(B, Sq, D)),
            "k_cache": _w((lambda *s: torch.randn(*s, dtype=torch.bfloat16) * 0.8)(B, H, Sk, Dh)),
            "v_cache": _w((lambda *s: torch.randn(*s, dtype=torch.bfloat16) * 0.05)(B, H, Sk, Dh)),
            "wq": _w((lambda *s: torch.randn(*s, dtype=torch.bfloat16) * 0.8)(D, H * Dh) * (D ** -0.5)),
            "wo": _w((lambda *s: torch.randn(*s, dtype=torch.bfloat16) * 0.05)(H * Dh, D) * ((H * Dh) ** -0.5)),
        }
    _B_in = _B_setup()

    return {
        "A_x": _A_in["x"],
        "A_k_cache": _A_in["k_cache"],
        "A_v_cache": _A_in["v_cache"],
        "A_wq": _A_in["wq"],
        "A_wo": _A_in["wo"],
        "B_x": _B_in["x"],
        "B_k_cache": _B_in["k_cache"],
        "B_v_cache": _B_in["v_cache"],
        "B_wq": _B_in["wq"],
        "B_wo": _B_in["wo"],
    }

def reference(A_x, A_k_cache, A_v_cache, A_wq, A_wo, B_x, B_k_cache, B_v_cache, B_wq, B_wo):
    def _A_ref(x, k_cache, v_cache, wq, wo):
        B, Sq, D = x.shape
        Hq, Dh = 32, 192
        Hkv = k_cache.shape[1]
        rep = Hq // Hkv
        q = (lambda x, *d: x.permute(*d))((x @ wq).reshape(B, Sq, Hq, Dh), 0, 2, 1, 3)
        k = (lambda x, n, axis: torch.repeat_interleave(x, n, dim=axis))(k_cache, rep, axis=1)
        v = (lambda x, n, axis: torch.repeat_interleave(x, n, dim=axis))(v_cache, rep, axis=1)
        scores = torch.einsum("bhqd,bhkd->bhqk", q, k) * (Dh ** -0.5)
        p = _softmax(scores, axis=-1)
        o = torch.einsum("bhqk,bhkd->bhqd", p, v)
        return (lambda x, *d: x.permute(*d))(o, 0, 2, 1, 3).reshape(B, Sq, Hq * Dh) @ wo

    def _B_ref(x, k_cache, v_cache, wq, wo):
        B, Sq, D = x.shape
        H, Dh = 32, 192
        q = (lambda x, *d: x.permute(*d))((x @ wq).reshape(B, Sq, H, Dh), 0, 2, 1, 3)
        scores = torch.einsum("bhqd,bhkd->bhqk", q, k_cache) * (Dh ** -0.5)
        p = _softmax(scores, axis=-1)
        o = torch.einsum("bhqk,bhkd->bhqd", p, v_cache)
        return (lambda x, *d: x.permute(*d))(o, 0, 2, 1, 3).reshape(B, Sq, H * Dh) @ wo

    a = _A_ref(A_x, A_k_cache, A_v_cache, A_wq, A_wo)
    b = _B_ref(B_x, B_k_cache, B_v_cache, B_wq, B_wo)
    return torch.concatenate([a, b], axis=-1)
```

```python
import re

INF = 10 ** 9


def regs(spec):
    out = set()
    if spec is None:
        return out
    if isinstance(spec, (list, tuple, set)):
        for s in spec:
            out |= regs(s)
        return out
    m = re.fullmatch(r"([vas])\[(\d+):(\d+)\]", spec)
    if m:
        return {"%s%d" % (m.group(1), i) for i in range(int(m.group(2)), int(m.group(3)) + 1)}
    if re.fullmatch(r"[vas]\d+", spec) or spec in ("m0", "vcc", "exec", "scc"):
        return {spec}
    return out


def R(f, lo, n=1):
    return "%s%d" % (f, lo) if n == 1 else "%s[%d:%d]" % (f, lo, lo + n - 1)


class I:
    __slots__ = ("text", "kind", "rd", "wr", "tag", "need", "lds", "cin", "sdata", "states")

    def __init__(self, text, kind, rd=None, wr=None, tag=None, need=None, lds=None, cin=None, sdata=None, states=1):
        self.text = text
        self.kind = kind
        self.rd = regs(rd)
        self.wr = regs(wr)
        self.tag = tag
        self.need = need
        self.lds = lds
        self.cin = regs(cin)
        self.sdata = regs(sdata)
        self.states = states


def mfma(d, a, b, c):
    return I("v_mfma_f32_16x16x32_bf16 %s, %s, %s, %s" % (d, a, b, c), "mfma", rd=[a, b, c], wr=d, cin=c)


def valu(op, d, *src, mods=""):
    kind = "trans" if re.match(r"v_(exp|rcp|log|rsq|sqrt)_", op) else "valu"
    rd = list(src)
    wr = [d]
    if op.startswith("v_permlane"):
        kind = "perm"
        rd = [d] + list(src)
        wr = [d] + list(src)
    if op.startswith("v_fmac"):
        rd.append(d)
    if op.startswith("v_readfirstlane") or op.startswith("v_readlane"):
        kind = "rfl"
    clean = [re.sub(r"^-|^abs\(|\)$", "", str(s)) for s in rd]
    return I("%s %s%s" % (op, ", ".join([d] + [str(s) for s in src]), (" " + mods) if mods else ""), kind, rd=clean, wr=wr)


def salu(op, d, *src):
    wr = [d, "scc"]
    rd = [str(s) for s in src]
    if op.startswith("s_cmp"):
        rd = [d] + rd
        wr = ["scc"]
    if op.startswith("s_mov") or op.startswith("s_cselect") or op.startswith("s_mul"):
        wr = [d]
    return I("%s %s" % (op, ", ".join([d] + [str(s) for s in src])), "salu", rd=rd, wr=wr)


def raw(text, kind="salu", rd=None, wr=None):
    return I(text, kind, rd=rd, wr=wr)


def nop(n):
    return I("s_nop %d" % (n - 1), "salu", states=n)


def dsread(op, d, addr, off, tag=None, lds=None):
    return I("%s %s, %s offset:%d" % (op, d, addr, off), "ds", rd=addr, wr=d, tag=tag, lds=lds)


def dswrite(op, addr, data, off, tag=None):
    return I("%s %s, %s offset:%d" % (op, addr, data, off), "dsw", rd=[addr, data], tag=tag)


def dma(vaddr, srd, soff, off, flags="", tag=None, lds=None):
    t = "buffer_load_dwordx4 %s, %s, %s offen" % (vaddr, srd, soff)
    if off:
        t += " offset:%d" % off
    if flags:
        t += " " + flags
    return I(t + " lds", "dma", rd=[vaddr, srd, str(soff), "m0"], tag=tag, lds=lds)


def vload(d, vaddr, srd, soff, off, flags="", tag=None, op="buffer_load_dwordx4"):
    t = "%s %s, %s, %s, %s offen" % (op, d, vaddr, srd, soff)
    if off:
        t += " offset:%d" % off
    if flags:
        t += " " + flags
    return I(t, "vld", rd=[vaddr, srd, str(soff)], wr=d, tag=tag)


def vstore(data, vaddr, srd, soff, off, flags="", tag=None, op="buffer_store_dwordx4"):
    t = "%s %s, %s, %s, %s offen" % (op, data, vaddr, srd, soff)
    if off:
        t += " offset:%d" % off
    if flags:
        t += " " + flags
    return I(t, "vst", rd=[data, vaddr, srd, str(soff)], tag=tag, sdata=data)


def waitv(*tags):
    return I("<waitv>", "waitv", need=tags)


def waitl(*tags):
    return I("<waitl>", "waitl", need=tags)


def waitall(vm=True, lg=True):
    return I("<waitall>", "waitall", need=(vm, lg))


def barrier():
    return I("s_barrier", "bar")


def branch(text):
    return I(text, "br", rd="scc")


VM = ("dma", "vld", "vst")
VALUK = ("valu", "trans", "perm", "rfl")


class Prog:
    def __init__(self, name):
        self.name = name
        self.trace = []
        self.layout = []
        self.align = {}

    def block(self, label, ins, align=None):
        self.trace.append((label, ins))
        if label not in self.layout:
            self.layout.append(label)
        if align:
            self.align[label] = align

    def _resolve(self):
        nv, nl = {}, {}
        vq, lq = [], []
        for label, ins in self.trace:
            for k, i in enumerate(ins):
                key = (label, k)
                if i.kind in VM:
                    vq.append(i.tag)
                elif i.kind in ("ds", "dsw"):
                    lq.append(i.tag)
                elif i.kind == "waitall":
                    if i.need[0]:
                        vq = []
                    if i.need[1]:
                        lq = []
                elif i.kind in ("waitv", "waitl"):
                    q = vq if i.kind == "waitv" else lq
                    n = INF
                    for t in i.need:
                        for pos in range(len(q) - 1, -1, -1):
                            if q[pos] == t:
                                n = min(n, len(q) - 1 - pos)
                                break
                    d = nv if i.kind == "waitv" else nl
                    d[key] = min(d.get(key, INF), n)
        self.nv, self.nl = nv, nl

    def _cap(self, kind, n):
        mx = 63 if kind == "waitv" else 15
        return min(n, mx) if n < INF else INF

    def _check(self):
        pads = {}
        errs = []
        for attempt in range(4):
            changed = False
            errs = []
            vq, lq = [], []
            t = 0
            lastw = {}
            lastc = {}
            lasts = {}
            nbar = 0
            lds_w = []
            lds_r = []
            for label, ins in self.trace:
                for k, i in enumerate(ins):
                    key = (label, k)
                    if i.kind in ("waitv", "waitl"):
                        n = self._cap(i.kind, (self.nv if i.kind == "waitv" else self.nl)[key])
                        if n >= INF:
                            continue
                        q = vq if i.kind == "waitv" else lq
                        while len(q) > n:
                            o = q.pop(0)
                            if o[1] is not None:
                                o[1][3] = nbar
                        t += 1
                        continue
                    if i.kind == "waitall":
                        for on, q in zip(i.need, (vq, lq)):
                            if on:
                                while q:
                                    o = q.pop(0)
                                    if o[1] is not None:
                                        o[1][3] = nbar
                        t += 1
                        continue
                    t += pads.get(key, 0)
                    need = 0

                    def req(since, n):
                        nonlocal need
                        have = t - since - 1
                        if have < n:
                            need = max(need, n - have)

                    for r in i.rd:
                        w = lastw.get(r)
                        if w:
                            wt, wk, wi = w
                            if wk in VALUK and r[0] in "va" and r != "vcc":
                                if i.kind == "mfma":
                                    req(wt, 2)
                                if i.kind == "perm":
                                    req(wt, 2)
                                if i.kind == "rfl":
                                    req(wt, 1)
                                if wk == "trans" and i.kind in ("valu", "perm", "rfl"):
                                    req(wt, 1)
                            if wk in VALUK and (r[0] == "s" or r == "vcc") and r != "scc":
                                if i.kind in VM:
                                    req(wt, 5)
                                if i.kind in VALUK:
                                    req(wt, 2)
                                if i.kind in ("salu", "br"):
                                    req(wt, 4)
                            if wk == "mfma":
                                if i.kind == "mfma":
                                    if r in i.cin and i.cin == wi.wr and r not in (i.rd - i.cin):
                                        pass
                                    elif r in i.cin:
                                        req(wt, 6)
                                    else:
                                        req(wt, 8)
                                else:
                                    req(wt, 8)
                            if r == "m0" and i.kind == "dma":
                                req(wt, 1)
                    for r in i.wr:
                        w = lastw.get(r)
                        if w and w[1] == "mfma" and i.kind != "mfma":
                            req(w[0], 8)
                        if w and w[1] == "mfma" and i.kind == "mfma" and i.wr != w[2].wr:
                            req(w[0], 6)
                        if r in lastc and i.kind in VALUK:
                            req(lastc[r], 3)
                        if r in lasts:
                            req(lasts[r], 2)
                    if need:
                        pads[key] = pads.get(key, 0) + need
                        t += need
                        changed = True
                    for q, nm in ((vq, "vm"), (lq, "lgkm")):
                        for o in q:
                            bad = o[0].wr & (i.rd | i.wr)
                            if bad:
                                errs.append("%s[%d] %s touches pending %s dest %s of %s" % (label, k, i.text, nm, sorted(bad)[:2], o[0].text))
                    rec = None
                    if i.lds is not None:
                        lo, hi, tile = i.lds
                        rec = [lo, hi, tile, None]
                        if i.kind == "ds":
                            if tile is not None:
                                cover = [w for w in lds_w if w[0] < hi and lo < w[1]]
                                if not cover:
                                    errs.append("%s[%d] %s reads LDS never written (%s)" % (label, k, i.text, tile))
                                for w in cover:
                                    if w[2] != tile:
                                        errs.append("%s[%d] %s expects %s but slot holds %s" % (label, k, i.text, tile, w[2]))
                                    elif w[3] is None or w[3] >= nbar:
                                        errs.append("%s[%d] %s reads %s before landed+barrier" % (label, k, i.text, tile))
                                lds_r.append(rec)
                            else:
                                rec = None
                        else:
                            for rr in lds_r:
                                if rr[0] < hi and lo < rr[1] and (rr[3] is None or rr[3] >= nbar):
                                    errs.append("%s[%d] %s (%s) overwrites %s still being read" % (label, k, i.text, tile, rr[2]))
                            lds_r[:] = [rr for rr in lds_r if not (rr[0] < hi and lo < rr[1])]
                            for w in lds_w:
                                if w[0] < hi and lo < w[1] and w[2] != tile and (w[3] is None or w[3] >= nbar):
                                    errs.append("%s[%d] %s (%s) overwrites %s still landing" % (label, k, i.text, tile, w[2]))
                            lds_w[:] = [w for w in lds_w if not (w[0] < hi and lo < w[1] and w[2] != tile)]
                            lds_w.append(rec)
                    if i.kind in VM:
                        vq.append((i, rec))
                        if len(vq) > 63:
                            o = vq.pop(0)
                            if o[1] is not None:
                                o[1][3] = nbar
                    elif i.kind in ("ds", "dsw"):
                        lq.append((i, rec))
                        if len(lq) > 15:
                            errs.append("%s[%d] more than 15 LDS ops outstanding" % (label, k))
                            lq.pop(0)
                    if i.kind == "bar":
                        nbar += 1
                    for r in i.wr:
                        lastw[r] = (t + i.states - 1, i.kind, i)
                    for r in i.cin:
                        lastc[r] = t
                    for r in i.sdata:
                        lasts[r] = t
                    t += i.states
            if not changed:
                break
        self.pads = pads
        return errs

    def emit(self):
        first = {}
        for label, ins in self.trace:
            if label not in first:
                first[label] = ins
            else:
                a = first[label]
                assert len(a) == len(ins), "block %s differs in length %d vs %d" % (label, len(a), len(ins))
                for x, y in zip(a, ins):
                    assert x.text == y.text, "block %s differs: %s | %s" % (label, x.text, y.text)
        self._resolve()
        errs = self._check()
        if errs:
            for e in errs[:30]:
                print("CHECK:", e)
            raise SystemExit("%d check errors in %s" % (len(errs), self.name))
        out = []
        self.stats = {}
        for label in self.layout:
            if label in self.align:
                out.append(".p2align %d" % self.align[label])
            out.append("%s:" % label)
            ins = first[label]
            k = 0
            npad = 0
            while k < len(ins):
                i = ins[k]
                key = (label, k)
                if i.kind in ("waitv", "waitl"):
                    parts = {}
                    while k < len(ins) and ins[k].kind in ("waitv", "waitl") and ins[k].kind not in parts:
                        j = ins[k]
                        n = self._cap(j.kind, (self.nv if j.kind == "waitv" else self.nl)[(label, k)])
                        if n < INF:
                            out.append("    s_waitcnt %s(%d)" % ("vmcnt" if j.kind == "waitv" else "lgkmcnt", n))
                        parts[j.kind] = n
                        k += 1
                    continue
                if i.kind == "waitall":
                    out.append("    s_waitcnt " + " ".join(x for on, x in zip(i.need, ("vmcnt(0)", "lgkmcnt(0)")) if on))
                    k += 1
                    continue
                p = self.pads.get(key, 0)
                npad += p
                while p > 0:
                    q = min(p, 16)
                    out.append("    s_nop %d" % (q - 1))
                    p -= q
                out.append("    " + i.text)
                k += 1
            self.stats[label] = (len(ins), sum(1 for x in ins if x.kind == "mfma"), npad)
        return "\n".join(out) + "\n"


class Gaps:
    def __init__(self, mf):
        self.mf = mf
        n = len(mf)
        self.s = [[] for _ in range(n)]
        self.m = [None] * n
        self.v = [[] for _ in range(n)]
        self.pre = []

    def cost(self, g):
        c = 1 if self.m[g] is not None else 0
        for x in self.v[g]:
            c += 2 if x.kind == "trans" else 1
        return c

    def put_s(self, g, *ins):
        self.s[g].extend(ins)

    def put_m(self, g, i):
        while self.m[g] is not None or self.cost(g) > 1:
            g += 1
        self.m[g] = i
        return g

    def put_v(self, g, i, limit=None):
        w = 2 if i.kind == "trans" else 1
        while self.cost(g) + w > 2:
            g += 1
        if limit is not None:
            assert g <= limit, "no room for %s before gap %d" % (i.text, limit)
        self.v[g].append(i)
        return g

    def flat(self, lo=0, hi=None):
        out = list(self.pre) if lo == 0 else []
        for g in range(lo, len(self.mf) if hi is None else hi):
            if self.mf[g] is not None:
                out.append(self.mf[g])
            out.extend(self.s[g])
            if self.m[g] is not None:
                out.append(self.m[g])
            out.extend(self.v[g])
        return out
```

```python
import math, struct, sys
from asmgen import *

NAME = "concat_heads__gqa_block_cached__mha_block_cached__near_ridge"
CFG = dict(kv_flags="nt", w_flags="", x_flags="", ost_flags="", old_flags="", wo_flags="", pst_flags="", pld_flags="",
           stamps=False)

KB, VB = 0, 73728
SLOT2 = 24576
WRING, WSLOT = 122880, 12320
WS_O = 0
WS_P = 2 * 16 * 32 * 61440
WS_T = WS_P + 4 * 6553600
WS_SIZE = 440664064


def f32bits(x):
    return struct.unpack("<I", struct.pack("<f", x))[0]


SCALE = f32bits(math.log2(math.e) / math.sqrt(192.0))


def V(op, d, *s, **k):
    return valu(op, d, *s, **k)


def S(op, d, *s):
    return salu(op, d, *s)


def decode_wg():
    return [
        V("v_readfirstlane_b32", "s28", "v0"),
        S("s_and_b32", "s48", "s2", 7),
        S("s_lshr_b32", "s49", "s2", 3),
        S("s_lshr_b32", "s44", "s48", 2),
        S("s_and_b32", "s45", "s48", 1),
        S("s_lshl_b32", "s45", "s45", 2),
        S("s_and_b32", "s50", "s49", 3),
        S("s_add_u32", "s45", "s45", "s50"),
        S("s_lshr_b32", "s46", "s49", 2),
        S("s_lshr_b32", "s47", "s48", 1),
        S("s_and_b32", "s47", "s47", 1),
        S("s_lshr_b32", "s28", "s28", 6),
    ]


def srd(base, lo, hi, off, nrec):
    return [
        S("s_add_u32", "s%d" % base, lo, off),
        S("s_addc_u32", "s%d" % (base + 1), hi, 0),
        S("s_mov_b32", "s%d" % (base + 2), nrec),
        S("s_mov_b32", "s%d" % (base + 3), "0x20000"),
    ]


def lane_rowchunk(p, vrow, vc, vl):
    return [
        V("v_add_u32", vc, p * 64, vl),
        V("v_mul_u32_u24", vrow, 2731, vc),
        V("v_lshrrev_b32", vrow, 16, vrow),
        V("v_mul_u32_u24", "v30", 24, vrow),
        V("v_sub_u32", vc, vc, "v30"),
    ]


def stamp(n):
    if not CFG["stamps"]:
        return []
    return [
        raw("s_memtime s[92:93]", wr="s[92:93]"),
        raw("s_memrealtime s[94:95]", wr="s[94:95]"),
        waitall(False, True),
        V("v_writelane_b32", "v0", "s92", 0),
        raw("s_mov_b64 exec, 1"),
        raw("s_nop 4"),
        I("buffer_store_dword v0, off, s[96:99], s100", "vst", rd=["v0"], tag="stamp"),
        raw("s_nop 2"),
        V("v_writelane_b32", "v0", "s94", 0),
        raw("s_nop 2"),
        I("buffer_store_dword v0, off, s[96:99], s100 offset:4", "vst", rd=["v0"], tag="stamp"),
        raw("s_nop 2"),
        V("v_writelane_b32", "v0", "0", 0),
        raw("s_mov_b64 exec, -1"),
        S("s_add_u32", "s100", "s100", 8),
        raw("s_nop 4"),
    ]


def stamp_setup(wslo, wshi, kidx):
    if not CFG["stamps"]:
        return []
    return srd(96, wslo, wshi, WS_T + kidx * 256 * 8 * 256, 256 * 8 * 256) + [
        S("s_lshl_b32", "s100", "s2", 3), S("s_add_u32", "s100", "s100", "s28"), S("s_lshl_b32", "s100", "s100", 8)]


vX, vWd, vWr, vKV, vKr, vVr, vL16 = "v1", ["v2", "v3", "v4"], ["v5", "v6"], ["v7", "v8", "v9"], ["v10", "v11"], ["v12", "v13", "v14", "v15"], "v0"
sX, sW, sK, sV, sO = "s[8:11]", "s[12:15]", "s[16:19]", "s[20:23]", "s[24:27]"
XQ = ["0", "s38", "s39", "s40", "s41"]
QACC, QB, ZB, LB = 16, 16, 136, 196
FR = 240


def frag(n):
    return FR + 4 * (n % 4)


def k1_setup():
    c = []
    c += [S("s_cmp_ge_u32", "s2", 256), branch("s_cbranch_scc1 A_end")]
    c += [raw("s_load_dwordx8 s[52:59], s[0:1], 0", wr="s[52:59]"),
          raw("s_load_dwordx8 s[60:67], s[0:1], 40", wr="s[60:67]"),
          raw("s_load_dwordx2 s[68:69], s[0:1], 96", wr="s[68:69]")]
    c += decode_wg()
    c += [V("v_and_b32", "v20", 63, "v0")]
    c += [raw("s_waitcnt lgkmcnt(0)")]
    c += [S("s_cmp_eq_u32", "s44", 0)]
    for k in range(4):
        c += [S("s_cselect_b64", "s[%d:%d]" % (52 + 2 * k, 53 + 2 * k), "s[%d:%d]" % (52 + 2 * k, 53 + 2 * k), "s[%d:%d]" % (60 + 2 * k, 61 + 2 * k))]
    c += [S("s_lshr_b32", "s70", "s28", 1), S("s_and_b32", "s71", "s28", 1),
          S("s_lshl_b32", "s72", "s45", 1), S("s_add_u32", "s72", "s72", "s70"),
          S("s_lshl_b32", "s73", "s47", 3), S("s_add_u32", "s73", "s73", "s46"), S("s_lshl_b32", "s73", "s73", 1)]
    c += [S("s_mul_i32", "s74", "s72", 204800), S("s_mul_i32", "s75", "s71", 102400), S("s_add_u32", "s74", "s74", "s75")]
    c += srd(8, "s52", "s53", "s74", 102400)
    c += [S("s_mul_i32", "s74", "s73", 384), S("s_sub_u32", "s75", 640 * 12288, "s74")]
    c += srd(12, "s58", "s59", "s74", "s75")
    c += [S("s_lshl_b32", "s74", "s72", 5), S("s_add_u32", "s76", "s74", "s73"), S("s_mul_i32", "s74", "s76", 196608)]
    c += srd(16, "s54", "s55", "s74", 196608)
    c += srd(20, "s56", "s57", "s74", 196608)
    c += [S("s_lshl_b32", "s74", "s44", 9), S("s_add_u32", "s74", "s74", "s76"), S("s_mul_i32", "s74", "s74", 61440),
          S("s_mul_i32", "s75", "s71", 5120), S("s_add_u32", "s74", "s74", "s75"), S("s_add_u32", "s74", "s74", WS_O)]
    c += srd(24, "s68", "s69", "s74", 61440 - 5120)
    c += stamp_setup("s68", "s69", 0)
    c += [S("s_mul_i32", "s31", "s28", 3080), S("s_add_u32", "s31", "s31", WRING),
          S("s_mul_i32", "s33", "s28", 6144),
          S("s_add_u32", "s34", "s33", VB), S("s_add_u32", "s33", "s33", KB)]
    for t in range(1, 5):
        c += [S("s_mov_b32", "s%d" % (37 + t), 20480 * t)]
    c += [S("s_mov_b32", "s42", hex(SCALE)), S("s_mov_b32", "s43", hex(SCALE)), S("s_mov_b32", "s30", 0)]
    c += [V("v_and_b32", "v21", 15, "v20"), V("v_lshrrev_b32", "v22", 4, "v20"),
          V("v_bfe_u32", "v23", "v20", 2, 2), V("v_and_b32", "v24", 3, "v20")]
    c += [V("v_mul_u32_u24", vX, 1280, "v21"), V("v_lshl_add_u32", vX, "v22", 4, vX)]
    c += [S("s_mul_i32", "s74", "s28", 8 * 12288), S("s_mul_i32", "s75", "s71", 6144)]
    for p in range(3):
        c += lane_rowchunk(p, "v25", "v26", "v20")
        c += [V("v_bfe_u32", "v27", "v25", 1, 1), V("v_lshlrev_b32", "v27", 2, "v27"), V("v_xor_b32", "v27", "v27", "v26"),
              V("v_mul_u32_u24", "v28", 12288, "v25"), V("v_lshl_add_u32", "v28", "v27", 4, "v28"),
              V("v_add_u32", "v28", "s74", "v28"), V("v_subrev_u32", vWd[p], p * 1024, "v28")]
        c += [V("v_bfe_u32", "v27", "v25", 1, 2), V("v_lshlrev_b32", "v27", 1, "v27"), V("v_xor_b32", "v27", "v27", "v20"),
              V("v_lshlrev_b32", "v27", 4, "v27"), V("v_add_u32", vKV[p], "s75", "v27")]
    c += [V("v_mul_u32_u24", "v25", 3080, "v22"), V("v_mul_u32_u24", "v26", 384, "v23"), V("v_add_u32", "v25", "v25", "v26"),
          V("v_add_u32", "v25", WRING, "v25"), V("v_lshrrev_b32", "v26", 1, "v23"), V("v_lshlrev_b32", "v26", 2, "v26")]
    for m in range(2):
        c += [V("v_or_b32", "v27", 4 * m, "v24"), V("v_xor_b32", "v27", "v27", "v26"), V("v_lshl_add_u32", vWr[m], "v27", 4, "v25")]
    c += [S("s_mul_i32", "s74", "s70", 12288), S("s_add_u32", "s75", "s74", VB), S("s_add_u32", "s74", "s74", KB)]
    c += [V("v_mul_u32_u24", "v25", 384, "v21"), V("v_add_u32", "v25", "s74", "v25"),
          V("v_bfe_u32", "v26", "v21", 1, 2), V("v_lshlrev_b32", "v26", 1, "v26")]
    for m in range(2):
        c += [V("v_or_b32", "v27", 4 * m, "v22"), V("v_xor_b32", "v27", "v27", "v26"), V("v_lshl_add_u32", vKr[m], "v27", 4, "v25")]
    c += [V("v_lshrrev_b32", "v28", 2, "v20"), V("v_mul_u32_u24", "v25", 384, "v28"), V("v_add_u32", "v25", "s75", "v25"),
          V("v_and_b32", "v27", 1, "v24"), V("v_lshl_add_u32", "v25", "v27", 3, "v25"),
          V("v_bfe_u32", "v26", "v28", 1, 2), V("v_lshlrev_b32", "v26", 1, "v26"), V("v_lshrrev_b32", "v29", 1, "v24")]
    for m in range(4):
        c += [V("v_or_b32", "v27", 2 * m, "v29"), V("v_xor_b32", "v27", "v27", "v26"), V("v_lshl_add_u32", vVr[m], "v27", 4, "v25")]
    c += [V("v_lshlrev_b32", vL16, 4, "v20")]
    return c


def wslot(i):
    return (i + 2) % 3


def w_dma(rnd, i):
    lo = WRING + wslot(i) * WSLOT
    pre = [S("s_add_u32", "m0", "s31", wslot(i) * WSLOT)]
    d = [dma(vWd[p], sW, "s32", p * 1024, CFG["w_flags"], tag=("W", rnd, i), lds=(lo, lo + WSLOT, ("W", rnd, i))) for p in range(3)]
    post = [S("s_add_u32", "s32", "s32", 32 * 12288)]
    return pre, d, post


def kv_dma(which, rnd, j, m0dyn=None):
    base, sb, so, sr = (KB, "s33", "s35", sK) if which == "K" else (VB, "s34", "s36", sV)
    slot = j % 3
    lo = base + slot * SLOT2
    tag = (which, rnd, j)
    out = []
    for u in range(2):
        for p in range(3):
            pre = []
            if p == 0:
                if m0dyn:
                    pre = [S("s_add_u32", "m0", m0dyn, u * 3072)]
                else:
                    pre = [S("s_add_u32", "m0", sb, slot * SLOT2 + u * 3072)]
            post = []
            if p == 2:
                post = [S("s_add_u32", so, so, 3072 if u == 0 else 12288 - 3072)]
            out.append((pre, dma(vKV[p], sr, so, p * 1024, CFG["kv_flags"], tag=tag, lds=(lo, lo + SLOT2, tag)), post))
    return out


def x_loads(rnd, m, imm_pair):
    out = []
    for qt in range(5):
        for e in range(2):
            d = R("a", (m % 3) * 40 + e * 20 + qt * 4, 4)
            out.append(vload(d, vX, sX, XQ[qt], imm_pair * 128 + e * 64, CFG["x_flags"], tag=("X", rnd, m)))
    return out


def w_reads(rnd, i, n, real=True):
    p, T = n >> 1, n & 1
    lo = WRING + wslot(i) * WSLOT
    out = []
    for half in range(2):
        off = wslot(i) * WSLOT + (p >> 1) * 128 + T * 8 + half * 1536
        out.append(dsread("ds_read_b64_tr_b16", R("a", frag(n) + 2 * half, 2), vWr[p & 1], off, tag=("Wf", rnd, i, n),
                          lds=(lo, lo + WSLOT, ("W", rnd, i) if real else None)))
    return out


def place_seq(G, g0, step, seq):
    g = g0
    for pre, m, post in seq:
        gg = G.put_m(g, m)
        assert gg == g, "gap %d busy" % g
        G.put_s(g - 1, *pre)
        G.put_s(g + 1, *post)
        g += step


def q_step(rnd, i):
    mf = []
    for n in range(12):
        p, T = n >> 1, n & 1
        for qt in range(5):
            d = R("v", QACC + (p * 5 + qt) * 8 + 4 * T, 4)
            b = R("a", ((i >> 1) % 3) * 40 + (i & 1) * 20 + qt * 4, 4)
            mf.append(mfma(d, R("a", frag(n), 4), b, "0" if i == 0 else d))
    G = Gaps(mf)
    for n in range(12):
        nn = n + 3
        rd = w_reads(rnd, i, nn) if nn < 12 else w_reads(rnd, i + 1, nn - 12, real=(i + 1 < 20))
        G.put_m(5 * n, rd[0])
        G.put_m(5 * n + 1, rd[1])
        G.put_s(5 * n + 4, waitl(("Wf", rnd, i, n + 1) if n < 11 else ("Wf", rnd, i + 1, 0)))
    G.put_s(43, waitv(("W", rnd, i + 1)), barrier())
    G.put_s(55, barrier())
    pre, d, post = w_dma(rnd, i + 3)
    G.put_s(56, *pre)
    for k in range(3):
        G.put_m(57 + k, d[k])
    tail = post
    if i & 1:
        G.put_s(58, waitv(("X", rnd, (i + 1) >> 1)))
    else:
        m = (i >> 1) + 2
        imm = m if i < 2 else m - 3 * ((i - 2) // 6)
        if i >= 2 and (i - 2) % 6 == 2:
            G.put_s(0, S("s_cmp_eq_u32", "s29", 1))
            G.put_s(1, S("s_cselect_b32", "s10", 0, "s10"))
        xl = x_loads(rnd, m, imm)
        for k in range(5):
            G.put_m(5 * k + 2, xl[2 * k])
            G.put_m(5 * k + 3, xl[2 * k + 1])
    if i == 1:
        place_seq(G, 3, 5, kv_dma("V", rnd, 0))
    if i >= 2 and (i - 2) % 6 == 1:
        place_seq(G, 3, 5, kv_dma("K", rnd, (i - 2) // 6, m0dyn="s37"))
        G.put_s(32, S("s_add_u32", "s37", "s37", SLOT2))
    ins = G.flat() + tail
    if i == 0:
        ins = [S("s_mov_b32", "s29", 3), S("s_mov_b32", "s37", "s33"), S("s_mov_b32", "s35", 0), S("s_mov_b32", "s36", 0),
               waitv(("W", rnd, 0), ("X", rnd, 0)), barrier()] + \
              sum([w_reads(rnd, 0, n) for n in range(3)], []) + [waitl(("Wf", rnd, 0, 0))] + ins
    if i >= 2 and (i - 2) % 6 == 5:
        ins += [V("v_add_u32", vX, 384, vX), S("s_sub_u32", "s29", "s29", 1), S("s_cmp_lg_u32", "s29", 0), branch("s_cbranch_scc1 A_q2")]
    return ins


def k_read(rnd, j, n, real=True):
    kt, ds = n // 6, n % 6
    slot = j % 3
    lo = KB + slot * SLOT2
    return dsread("ds_read_b128", R("a", frag(n), 4), vKr[ds & 1], slot * SLOT2 + kt * 6144 + (ds >> 1) * 128, tag=("Kf", rnd, j, n),
                  lds=(lo, lo + SLOT2, ("K", rnd, j) if real else None))


def v_reads(rnd, j, t):
    slot = j % 3
    lo = VB + slot * SLOT2
    return [dsread("ds_read_b64_tr_b16", R("a", frag(t) + 2 * half, 2), vVr[t & 3], slot * SLOT2 + half * 6144 + (t >> 2) * 128,
                   tag=("Vf", rnd, j, t), lds=(lo, lo + SLOT2, ("V", rnd, j))) for half in range(2)]


def q_epilogue(rnd):
    c = [V("v_subrev_u32", vX, 3 * 384, vX), S("s_mov_b32", "s10", 102400)]
    c += [waitall(False, True)]
    dm = kv_dma("V", rnd, 1)
    work = []
    for n in range(30):
        s = QACC + 8 * n
        w = [V("v_pk_mul_f32", R("v", s + 2 * k, 2), R("v", s + 2 * k, 2), "s[42:43]") for k in range(4)]
        w += [V("v_cvt_pk_bf16_f32", "v%d" % (QB + 4 * n + k), "v%d" % (s + 2 * k), "v%d" % (s + 2 * k + 1)) for k in range(4)]
        work.append(w)
    for n in range(30):
        if n < 6:
            pre, d, post = dm[n]
            c += pre + [nop(1), d] + post
        if n == 27:
            c += [waitv(("K", rnd, 0), ("K", rnd, 1), ("W", rnd, 22), ("X", rnd, 11)), barrier()]
            c += [k_read(rnd, 0, k) for k in range(3)]
        c += work[n]
    c += [V("v_mov_b32", "v%d" % (LB + qt), 0) for qt in range(5)]
    c += [waitl(("Kf", rnd, 0, 0))]
    return c


def zbuf(k):
    return ZB + 20 * (k % 3)


def softmax_ops(n):
    t0, t1 = zbuf(n + 1), zbuf(n)
    ops = []
    for qt in range(5):
        for k in range(4):
            r = "v%d" % (t0 + 4 * qt + k)
            ops.append(("e", 0, qt, k, V("v_exp_f32", r, r)))
            ops.append(("a", 0, qt, k, V("v_add_f32", "v%d" % (LB + qt), "v%d" % (LB + qt), r)))
    for qt in range(5):
        for k in range(4):
            r = "v%d" % (t1 + 4 * qt + k)
            ops.append(("e", 1, qt, k, V("v_exp_f32", r, r)))
            ops.append(("a", 1, qt, k, V("v_add_f32", "v%d" % (LB + qt), "v%d" % (LB + qt), r)))
        a, b = t0 + 4 * qt, t1 + 4 * qt
        for k, (d, s) in enumerate(((b + 3, b + 2), (b + 2, b), (b, a), (b + 1, a + 2))):
            ops.append(("c", 1, qt, k, V("v_cvt_pk_bf16_f32", "v%d" % d, "v%d" % s, "v%d" % (s + 1))))
    return ops


_sm_plan = None


def softmax_plan():
    global _sm_plan
    if _sm_plan:
        return _sm_plan
    cost = [0] * 120
    for n in range(24):
        nn = (n + 3) % 24
        cost[5 * n] += 1
        if nn >= 12:
            cost[5 * n + 1] += 1
    for n in range(6):
        cost[5 * n + 3] += 1
        cost[5 * (n + 9) + 3] += 1
    cost[43] += 1
    cost[103] += 1
    cost[119] += 1
    plan = {}
    ops = softmax_ops(0)

    def put(g, w):
        while cost[g % 120] + w > 2:
            g += 1
        cost[g % 120] += w
        return g
    for kind, T, qt, k, _ in ops:
        if kind == "e":
            g0 = (25 if T == 0 else 55) + qt + 5
            plan[(kind, T, qt, k)] = put(g0, 2)
    last = {}
    for kind, T, qt, k, _ in ops:
        if kind == "a":
            g = put(max(plan[("e", T, qt, k)] + 1, last.get(qt, 0)), 1)
            plan[(kind, T, qt, k)] = g
            last[qt] = g
        elif kind == "c":
            g = put(last[qt], 1)
            plan[(kind, T, qt, k)] = g
            last[qt] = g
    assert max(plan.values()) <= 120 + 27, max(plan.values())
    _sm_plan = plan
    return plan


def a_step(rnd, j):
    hasqk, haspv = j < 15, j >= 0
    mf = []
    for n in range(12):
        kt, ds = n // 6, n % 6
        for qt in range(5):
            d = R("v", (zbuf(j + 2) if kt == 0 else zbuf(j + 1)) + 4 * qt, 4)
            mf.append(mfma(d, R("a", frag(n), 4), R("v", QB + (ds * 5 + qt) * 4, 4), "0" if ds == 0 else d) if hasqk else None)
    for t in range(12):
        for qt in range(5):
            d = R("a", (t * 5 + qt) * 4, 4)
            mf.append(mfma(d, R("a", frag(t), 4), R("v", zbuf(j) + 4 * qt, 4), "0" if j == 0 else d) if haspv else None)
    G = Gaps(mf)
    for n in range(24):
        nn = n + 3
        if nn < 12:
            if hasqk:
                G.put_m(5 * n, k_read(rnd, j + 1, nn))
        elif nn < 24:
            if haspv:
                rd = v_reads(rnd, j, nn - 12)
                G.put_m(5 * n, rd[0])
                G.put_m(5 * n + 1, rd[1])
        elif j < 15:
            G.put_m(5 * n, k_read(rnd, j + 2, nn - 24, real=(j + 2 < 16)))
        nx = n + 1
        tag = ("Kf", rnd, j + 1, nx) if nx < 12 else ("Vf", rnd, j, nx - 12) if nx < 24 else ("Kf", rnd, j + 2, 0)
        G.put_s(5 * n + 4, waitl(tag))
    if haspv:
        if j == 15:
            G.put_s(43, waitall(False, True))
        G.put_s(43, waitv(("V", rnd, j)), barrier())
    if j < 15:
        G.put_s(103, waitv(("K", rnd, j + 2)), barrier())
    if 0 <= j < 15:
        place_seq(G, 3, 5, kv_dma("K", rnd, j + 3))
        place_seq(G, 48, 5, kv_dma("V", rnd, j + 2))
    if j == 15:
        G.put_s(60, S("s_add_u32", "s12", "s12", 384))
        G.put_s(61, S("s_addc_u32", "s13", "s13", 0))
        G.put_s(62, S("s_sub_u32", "s14", "s14", 384))
        G.put_s(63, S("s_cmp_eq_u32", "s30", 0))
        G.put_s(65, S("s_cselect_b32", "s14", "s14", 0))
        G.put_s(66, S("s_mov_b32", "s32", 0))
        seq = []
        for i in range(3):
            pre, d, post = w_dma(rnd + 1, i)
            seq += [(pre, d[0], []), ([], d[1], []), ([], d[2], post)]
        place_seq(G, 68, 5, seq)
    plan = softmax_plan()
    sched = []
    if j >= 0:
        sched += [(plan[o[:4]] - 120, o[4]) for o in softmax_ops(j) if plan[o[:4]] >= 120]
    if j < 15:
        sched += [(plan[o[:4]], o[4]) for o in softmax_ops(j + 1) if plan[o[:4]] < 120]
    for g, ins in sched:
        G.v[g].append(ins)
    ins = G.flat()
    if j == 0:
        ins += [S("s_mov_b32", "s29", 5)]
    if j > 0 and j % 3 == 2:
        ins += [S("s_sub_u32", "s29", "s29", 1), S("s_cmp_eq_u32", "s29", 0), branch("s_cbranch_scc1 A_s15")]
    if j > 0 and j % 3 == 0 and j < 15:
        ins += [branch("s_branch A_s1")]
    return ins


def next_round_prefetch_x(rnd):
    return x_loads(rnd, 0, 0) + x_loads(rnd, 1, 1)


def a_epilogue(rnd):
    c = []
    for qt in range(5):
        c += [V("v_mov_b32", "v%d" % (210 + qt), "v%d" % (LB + qt))]
    for qt in range(5):
        c += [V("v_permlane32_swap_b32", "v%d" % (210 + qt), "v%d" % (LB + qt))]
    for qt in range(5):
        c += [V("v_add_f32", "v%d" % (LB + qt), "v%d" % (LB + qt), "v%d" % (210 + qt))]
    for qt in range(5):
        c += [V("v_mov_b32", "v%d" % (210 + qt), "v%d" % (LB + qt))]
    for qt in range(5):
        c += [V("v_permlane16_swap_b32", "v%d" % (210 + qt), "v%d" % (LB + qt))]
    for qt in range(5):
        c += [V("v_add_f32", "v%d" % (LB + qt), "v%d" % (LB + qt), "v%d" % (210 + qt))]
    for qt in range(5):
        c += [V("v_rcp_f32", "v%d" % (220 + 2 * qt), "v%d" % (LB + qt))]
    c += [S("s_cmp_eq_u32", "s30", 0), S("s_cselect_b32", "s10", "s10", 0)]
    xl = next_round_prefetch_x(rnd + 1)
    n = 0
    for p in range(6):
        c += [S("s_mov_b32", "s48", p * 10240), S("s_mov_b32", "s49", p * 10240 + 4096)]
        for qt in range(5):
            t = 16 + 12 * (n % 8)
            for T in range(2):
                for k in range(4):
                    c += [V("v_accvgpr_read_b32", "v%d" % (t + 4 * T + k), "a%d" % (((2 * p + T) * 5 + qt) * 4 + k))]
            if p >= 2 and xl:
                c += [xl.pop(0), xl.pop(0)]
            for k in range(4):
                c += [V("v_pk_mul_f32", R("v", t + 2 * k, 2), R("v", t + 2 * k, 2), R("v", 220 + 2 * qt, 2), mods="op_sel_hi:[1,0]")]
            for k in range(4):
                c += [V("v_cvt_pk_bf16_f32", "v%d" % (t + 8 + k), "v%d" % (t + 2 * k), "v%d" % (t + 2 * k + 1))]
            c += [vstore(R("v", t + 8, 4), vL16, sO, "s48" if qt < 4 else "s49", qt * 1024 if qt < 4 else 0, CFG["ost_flags"], tag="O")]
            n += 1
    c += [S("s_add_u32", "s16", "s16", 196608), S("s_addc_u32", "s17", "s17", 0),
          S("s_add_u32", "s20", "s20", 196608), S("s_addc_u32", "s21", "s21", 0),
          S("s_add_u32", "s24", "s24", 61440), S("s_addc_u32", "s25", "s25", 0)]
    c += stamp(5)
    c += [S("s_add_u32", "s30", "s30", 1), S("s_cmp_eq_u32", "s30", 1), branch("s_cbranch_scc1 A_q0")]
    return c


def gen_k1():
    P = Prog("attn")
    c = k1_setup()
    c += stamp(0)
    c += [S("s_mov_b32", "s32", 0)]
    for i in range(3):
        pre, d, post = w_dma(0, i)
        c += pre + [nop(1)] + d + post
        if i == 0:
            c += x_loads(0, 0, 0)
    c += x_loads(0, 1, 1)
    P.block("A_setup", c)
    for rnd in range(2):
        for i in range(20):
            lab = "A_q%d" % (i if i < 2 else 2 + (i - 2) % 6)
            P.block(lab, q_step(rnd, i), align=(6 if i in (0, 2) else None))
        P.block("A_qe", stamp(1) + q_epilogue(rnd) + stamp(2))
        for j in range(-1, 16):
            lab = "A_sm1" if j < 0 else "A_s0" if j == 0 else "A_s15" if j == 15 else "A_s%d" % (1 + (j - 1) % 3)
            P.block(lab, a_step(rnd, j), align=(6 if j in (1, 15) else None))
        P.block("A_ae", stamp(4) + a_epilogue(rnd))
    P.block("A_end", [raw("s_endpgm")])
    return P


NW2 = 6
OACC = 16


def k2_setup():
    c = []
    c += [S("s_cmp_ge_u32", "s2", 256), branch("s_cbranch_scc1 B_end")]
    c += [raw("s_load_dwordx2 s[52:53], s[0:1], 32", wr="s[52:53]"),
          raw("s_load_dwordx2 s[54:55], s[0:1], 72", wr="s[54:55]"),
          raw("s_load_dwordx2 s[68:69], s[0:1], 96", wr="s[68:69]")]
    c += decode_wg()
    c += [V("v_and_b32", "v20", 63, "v0")]
    c += [raw("s_waitcnt lgkmcnt(0)")]
    c += [S("s_cmp_eq_u32", "s44", 0), S("s_cselect_b64", "s[52:53]", "s[52:53]", "s[54:55]")]
    c += [S("s_lshr_b32", "s70", "s28", 1), S("s_and_b32", "s71", "s28", 1),
          S("s_lshl_b32", "s72", "s45", 1), S("s_add_u32", "s72", "s72", "s70"),
          S("s_lshl_b32", "s73", "s47", 1), S("s_lshr_b32", "s74", "s46", 2), S("s_add_u32", "s73", "s73", "s74"),
          S("s_and_b32", "s74", "s46", 3), S("s_and_b32", "s75", "s74", 1)]
    c += [S("s_mul_i32", "s76", "s73", 1536 * 1280), S("s_mul_i32", "s77", "s74", 320), S("s_lshl_b32", "s78", "s75", 6),
          S("s_sub_u32", "s77", "s77", "s78"), S("s_add_u32", "s76", "s76", "s77"), S("s_sub_u32", "s77", 1536 * 1280, "s77")]
    c += srd(12, "s52", "s53", "s76", "s77")
    c += [S("s_lshl_b32", "s76", "s44", 4), S("s_add_u32", "s79", "s76", "s72"), S("s_lshl_b32", "s76", "s79", 2),
          S("s_add_u32", "s76", "s76", "s73"), S("s_mul_i32", "s76", "s76", 8 * 61440),
          S("s_mul_i32", "s77", "s71", 5120), S("s_add_u32", "s76", "s76", "s77"), S("s_add_u32", "s76", "s76", WS_O)]
    c += srd(8, "s68", "s69", "s76", 8 * 61440 - 5120)
    c += [S("s_lshl_b32", "s76", "s79", 1), S("s_add_u32", "s76", "s76", "s71"), S("s_lshl_b32", "s76", "s76", 2),
          S("s_add_u32", "s76", "s76", "s74"), S("s_mul_i32", "s76", "s76", 25600), S("s_mul_i32", "s77", "s73", 6553600),
          S("s_add_u32", "s76", "s76", "s77"), S("s_add_u32", "s76", "s76", WS_P)]
    c += srd(24, "s68", "s69", "s76", 25600)
    c += stamp_setup("s68", "s69", 1)
    c += [S("s_mul_i32", "s31", "s28", 3080)]
    c += [V("v_lshrrev_b32", "v22", 4, "v20"), V("v_bfe_u32", "v23", "v20", 2, 2), V("v_and_b32", "v24", 3, "v20")]
    c += [S("s_mul_i32", "s76", "s28", 4 * 1280)]
    for p in range(3):
        c += lane_rowchunk(p, "v25", "v26", "v20")
        c += [V("v_bfe_u32", "v27", "v25", 1, 1), V("v_lshlrev_b32", "v27", 2, "v27"), V("v_xor_b32", "v27", "v27", "v26"),
              V("v_lshrrev_b32", "v28", 2, "v25"), V("v_mul_u32_u24", "v28", 12, "v28"), V("v_add_u32", "v28", "v28", "v25"),
              V("v_mul_u32_u24", "v28", 1280, "v28"), V("v_lshl_add_u32", "v28", "v27", 4, "v28"),
              V("v_add_u32", "v28", "s76", "v28"), V("v_subrev_u32", vWd[p], p * 1024, "v28")]
    c += [V("v_mul_u32_u24", "v25", 3080, "v22"), V("v_mul_u32_u24", "v26", 384, "v23"), V("v_add_u32", "v25", "v25", "v26"),
          V("v_lshrrev_b32", "v26", 1, "v23"), V("v_lshlrev_b32", "v26", 2, "v26")]
    for m in range(2):
        c += [S("s_add_u32", "s76", "s75", m), S("s_and_b32", "s77", "s76", 1), S("s_lshl_b32", "s77", "s77", 2),
              S("s_lshr_b32", "s76", "s76", 1), S("s_lshl_b32", "s76", "s76", 7),
              V("v_or_b32", "v27", "s77", "v24"), V("v_xor_b32", "v27", "v27", "v26"), V("v_lshl_add_u32", "v27", "v27", 4, "v25"),
              V("v_add_u32", vWr[m], "s76", "v27")]
    c += [V("v_lshlrev_b32", vL16, 4, "v20")]
    c += [S("s_mov_b32", "s32", 0), S("s_mov_b32", "s35", 0), S("s_mov_b32", "s36", 4096)]
    return c


def wo_dma(i):
    lo = (i % NW2) * WSLOT
    pre = [S("s_add_u32", "m0", "s31", lo)]
    d = [dma(vWd[p], sW, "s32", p * 1024, CFG["wo_flags"], tag=("W", i), lds=(lo, lo + WSLOT, ("W", i))) for p in range(3)]
    post = [S("s_add_u32", "s32", "s32", 32 * 1280)]
    return pre, d, post


def o_loads(i):
    out = [vload(R("a", (i % NW2) * 20 + qt * 4, 4), vL16, sX, "s35" if qt < 4 else "s36", qt * 1024 if qt < 4 else 0,
                 CFG["old_flags"], tag=("O", i)) for qt in range(5)]
    post = [S("s_add_u32", "s35", "s35", 10240), S("s_add_u32", "s36", "s36", 10240)]
    return out, post


def wo_reads(i, n, real=True):
    p, T = n >> 1, n & 1
    lo = (i % NW2) * WSLOT
    return [dsread("ds_read_b64_tr_b16", R("a", frag(10 * i + n) + 2 * half, 2), vWr[p & 1], lo + (p >> 1) * 128 + T * 8 + half * 1536,
                   tag=("Wf", i, n), lds=(lo, lo + WSLOT, ("W", i) if real else None)) for half in range(2)]


def o_step(i):
    mf = []
    for n in range(10):
        p, T = n >> 1, n & 1
        for qt in range(5):
            d = R("v", OACC + (qt * 5 + p) * 8 + 4 * T, 4)
            mf.append(mfma(d, R("a", frag(10 * i + n), 4), R("a", (i % NW2) * 20 + qt * 4, 4), "0" if i == 0 else d))
    G = Gaps(mf)
    for n in range(10):
        nn = n + 3
        rd = wo_reads(i, nn) if nn < 10 else wo_reads(i + 1, nn - 10, real=(i + 1 < 48))
        G.put_m(5 * n, rd[0])
        G.put_m(5 * n + 1, rd[1])
        G.put_s(5 * n + 4, waitl(("Wf", i, n + 1) if n < 9 else ("Wf", i + 1, 0)))
    G.put_s(33, waitv(("W", i + 1), ("O", i + 1)), barrier())
    pre, d, post = wo_dma(i + NW2 - 1)
    place_seq(G, 37, 5, [(pre, d[0], []), ([], d[1], []), ([], d[2], post)])
    ld, post = o_loads(i + NW2 - 1)
    place_seq(G, 3, 5, [([], ld[k], []) for k in range(5)])
    G.put_s(26, post[0])
    G.put_s(27, post[1])
    ins = G.flat()
    if i == 0:
        ins = [S("s_mov_b32", "s29", 8), waitv(("W", 0), ("O", 0)), barrier()] + sum([wo_reads(0, n) for n in range(3)], []) + \
              [waitl(("Wf", 0, 0))] + ins
    if i % 6 == 5:
        ins += [S("s_sub_u32", "s29", "s29", 1), S("s_cmp_eq_u32", "s29", 0), branch("s_cbranch_scc1 B_ep")]
    if i > 0 and i % 6 == 0:
        ins += [branch("s_branch B_k1")]
    return ins


def gen_k2():
    P = Prog("oproj")
    c = k2_setup()
    c += stamp(0)
    for i in range(NW2 - 1):
        pre, d, post = wo_dma(i)
        ld, post2 = o_loads(i)
        c += pre + ld + d + post + post2
    P.block("B_setup", c)
    for i in range(48):
        lab = "B_k0" if i == 0 else "B_k%d" % (1 + (i - 1) % 6)
        P.block(lab, o_step(i), align=(6 if i == 1 else None))
    c = stamp(1) + [waitall(False, True)]
    for n in range(25):
        s = OACC + 8 * n
        if n % 4 == 0:
            c += [S("s_mov_b32", "s48", n * 1024)]
        c += [V("v_cvt_pk_bf16_f32", "v%d" % (s + k), "v%d" % (s + 2 * k), "v%d" % (s + 2 * k + 1)) for k in range(4)]
        c += [vstore(R("v", s, 4), vL16, sO, "s48", (n % 4) * 1024, CFG["pst_flags"], tag="P")]
    c += stamp(2)
    P.block("B_ep", c, align=6)
    P.block("B_end", [raw("s_endpgm")])
    return P


def gen_k3():
    P = Prog("reduce")
    c = [S("s_cmp_ge_u32", "s2", 256), branch("s_cbranch_scc1 C_end")]
    c += [raw("s_load_dwordx2 s[52:53], s[0:1], 80", wr="s[52:53]"),
          raw("s_load_dwordx2 s[68:69], s[0:1], 96", wr="s[68:69]")]
    c += [V("v_readfirstlane_b32", "s28", "v0"), V("v_and_b32", "v1", 63, "v0"), V("v_lshlrev_b32", "v2", 4, "v1"),
          S("s_lshr_b32", "s28", "s28", 6)]
    c += [raw("s_waitcnt lgkmcnt(0)")]
    c += [S("s_mul_i32", "s44", "s2", 25600), S("s_mul_i32", "s45", "s28", 5120), S("s_add_u32", "s44", "s44", "s45"),
          S("s_add_u32", "s44", "s44", WS_P)]
    c += srd(8, "s68", "s69", "s44", 3 * 6553600 + 5120)
    for o in range(4):
        c += [S("s_mov_b32", "s%d" % (32 + 2 * o), o * 6553600), S("s_mov_b32", "s%d" % (33 + 2 * o), o * 6553600 + 4096)]
    for pp in range(5):
        for o in range(4):
            c += [vload(R("v", 16 + (pp * 4 + o) * 4, 4), "v2", sX, "s%d" % (32 + 2 * o + (pp == 4)), pp * 1024 if pp < 4 else 0,
                        CFG["pld_flags"], tag=("P", pp))]
    c += [S("s_and_b32", "s45", "s2", 3), S("s_mul_i32", "s45", "s45", 320),
          S("s_lshr_b32", "s46", "s2", 7), S("s_mul_i32", "s46", "s46", 1280), S("s_add_u32", "s45", "s45", "s46"),
          S("s_lshr_b32", "s46", "s2", 2), S("s_and_b32", "s46", "s46", 31), S("s_mul_i32", "s46", "s46", 5),
          S("s_add_u32", "s46", "s46", "s28"), S("s_mul_i32", "s46", "s46", 16 * 2560), S("s_add_u32", "s45", "s45", "s46"),
          S("s_sub_u32", "s46", 2560 * 2560, "s45")]
    c += srd(12, "s52", "s53", "s45", "s46")
    c += [V("v_and_b32", "v3", 15, "v1"), V("v_mul_u32_u24", "v3", 2560, "v3"), V("v_lshrrev_b32", "v4", 4, "v1"),
          V("v_lshl_add_u32", "v3", "v4", 4, "v3"), S("s_mov_b32", "s47", "0xffff0000")]
    for pp in range(5):
        c += [waitv(("P", pp))]
        for k in range(4):
            r = [16 + (pp * 4 + o) * 4 + k for o in range(4)]
            c += [V("v_lshlrev_b32", "v%d" % (6 + o), 16, "v%d" % r[o]) for o in range(4)]
            c += [V("v_and_b32", "v%d" % r[o], "s47", "v%d" % r[o]) for o in range(4)]
            c += [V("v_add_f32", "v6", "v6", "v7"), V("v_add_f32", "v8", "v8", "v9"),
                  V("v_add_f32", "v%d" % r[0], "v%d" % r[0], "v%d" % r[1]), V("v_add_f32", "v%d" % r[2], "v%d" % r[2], "v%d" % r[3]),
                  V("v_add_f32", "v6", "v6", "v8"), V("v_add_f32", "v%d" % r[0], "v%d" % r[0], "v%d" % r[2]),
                  V("v_cvt_pk_bf16_f32", "v%d" % r[0], "v6", "v%d" % r[0])]
        c += [vstore(R("v", 16 + pp * 16, 4), "v3", sW, "0", pp * 64, tag="out")]
    P.block("C_body", c)
    P.block("C_end", [raw("s_endpgm")])
    return P


def kd(name, vgpr, accum):
    return """.amdhsa_kernel %s
  .amdhsa_next_free_vgpr %d
  .amdhsa_next_free_sgpr 102
  .amdhsa_accum_offset %d
  .amdhsa_group_segment_fixed_size 0
  .amdhsa_kernarg_size 104
  .amdhsa_user_sgpr_count 2
  .amdhsa_user_sgpr_kernarg_segment_ptr 1
  .amdhsa_system_sgpr_workgroup_id_x 1
.end_amdhsa_kernel
""" % (name, vgpr, accum)


def generate(verbose=False):
    global _sm_plan
    _sm_plan = None
    ks = [("attn_kernel", gen_k1(), 512, 256, 256, 163840), ("oproj_kernel", gen_k2(), 512, 256, 256, NW2 * WSLOT),
          ("reduce_kernel", gen_k3(), 96, 96, 320, 0)]
    s = "; Two attention blocks (Q projection, softmax(QK^T)V, output projection), written with work/gen.py\n"
    for n, p, vg, ac, blk, lds in ks:
        s += "; @launch kernel=%s grid=(256,1,1) block=(%d,1,1) lds=%d\n" % (n, blk, lds)
    s += '.amdgcn_target "amdgcn-amd-amdhsa--gfx950"\n.text\n'
    for n, p, vg, ac, blk, lds in ks:
        s += ".globl %s\n.p2align 8\n.type %s,@function\n%s:\n" % (n, n, n)
        s += p.emit()
        if verbose:
            for lab, st in p.stats.items():
                print("%-10s instrs %4d mfma %4d nops %d" % (lab, *st))
    s += '.section .rodata,"a"\n'
    for n, p, vg, ac, blk, lds in ks:
        s += ".p2align 6\n" + kd(n, vg, ac)
    return s


if __name__ == "__main__":
    out = sys.argv[1] if len(sys.argv) > 1 else "cdna_kernels/%s.s" % NAME
    for a in sys.argv[2:]:
        k, v = a.split("=")
        CFG[k] = (v == "1") if k == "stamps" else v.replace("+", " ")
    open(out, "w").write(generate(verbose=True))
```

```python
import re

INF = 10 ** 9


def regs(spec):
    out = set()
    if spec is None:
        return out
    if isinstance(spec, (list, tuple, set)):
        for s in spec:
            out |= regs(s)
        return out
    m = re.fullmatch(r"([vas])\[(\d+):(\d+)\]", spec)
    if m:
        return {"%s%d" % (m.group(1), i) for i in range(int(m.group(2)), int(m.group(3)) + 1)}
    if re.fullmatch(r"[vas]\d+", spec) or spec in ("m0", "vcc", "exec", "scc"):
        return {spec}
    return out


def R(f, lo, n=1):
    return "%s%d" % (f, lo) if n == 1 else "%s[%d:%d]" % (f, lo, lo + n - 1)


class I:
    __slots__ = ("text", "kind", "rd", "wr", "tag", "need", "lds", "cin", "sdata", "states")

    def __init__(self, text, kind, rd=None, wr=None, tag=None, need=None, lds=None, cin=None, sdata=None, states=1):
        self.text = text
        self.kind = kind
        self.rd = regs(rd)
        self.wr = regs(wr)
        self.tag = tag
        self.need = need
        self.lds = lds
        self.cin = regs(cin)
        self.sdata = regs(sdata)
        self.states = states


def mfma(d, a, b, c):
    return I("v_mfma_f32_16x16x32_bf16 %s, %s, %s, %s" % (d, a, b, c), "mfma", rd=[a, b, c], wr=d, cin=c)


def valu(op, d, *src, mods=""):
    kind = "trans" if re.match(r"v_(exp|rcp|log|rsq|sqrt)_", op) else "valu"
    rd = list(src)
    wr = [d]
    if op.startswith("v_permlane"):
        kind = "perm"
        rd = [d] + list(src)
        wr = [d] + list(src)
    if op.startswith("v_fmac"):
        rd.append(d)
    if op.startswith("v_readfirstlane") or op.startswith("v_readlane"):
        kind = "rfl"
    clean = [re.sub(r"^-|^abs\(|\)$", "", str(s)) for s in rd]
    return I("%s %s%s" % (op, ", ".join([d] + [str(s) for s in src]), (" " + mods) if mods else ""), kind, rd=clean, wr=wr)


def salu(op, d, *src):
    wr = [d, "scc"]
    rd = [str(s) for s in src]
    if op.startswith("s_cmp"):
        rd = [d] + rd
        wr = ["scc"]
    if op.startswith("s_mov") or op.startswith("s_cselect") or op.startswith("s_mul"):
        wr = [d]
    return I("%s %s" % (op, ", ".join([d] + [str(s) for s in src])), "salu", rd=rd, wr=wr)


def raw(text, kind="salu", rd=None, wr=None):
    return I(text, kind, rd=rd, wr=wr)


def nop(n):
    return I("s_nop %d" % (n - 1), "salu", states=n)


def dsread(op, d, addr, off, tag=None, lds=None):
    return I("%s %s, %s offset:%d" % (op, d, addr, off), "ds", rd=addr, wr=d, tag=tag, lds=lds)


def dswrite(op, addr, data, off, tag=None):
    return I("%s %s, %s offset:%d" % (op, addr, data, off), "dsw", rd=[addr, data], tag=tag)


def dma(vaddr, srd, soff, off, flags="", tag=None, lds=None):
    t = "buffer_load_dwordx4 %s, %s, %s offen" % (vaddr, srd, soff)
    if off:
        t += " offset:%d" % off
    if flags:
        t += " " + flags
    return I(t + " lds", "dma", rd=[vaddr, srd, str(soff), "m0"], tag=tag, lds=lds)


def vload(d, vaddr, srd, soff, off, flags="", tag=None, op="buffer_load_dwordx4"):
    t = "%s %s, %s, %s, %s offen" % (op, d, vaddr, srd, soff)
    if off:
        t += " offset:%d" % off
    if flags:
        t += " " + flags
    return I(t, "vld", rd=[vaddr, srd, str(soff)], wr=d, tag=tag)


def vstore(data, vaddr, srd, soff, off, flags="", tag=None, op="buffer_store_dwordx4"):
    t = "%s %s, %s, %s, %s offen" % (op, data, vaddr, srd, soff)
    if off:
        t += " offset:%d" % off
    if flags:
        t += " " + flags
    return I(t, "vst", rd=[data, vaddr, srd, str(soff)], tag=tag, sdata=data)


def waitv(*tags):
    return I("<waitv>", "waitv", need=tags)


def waitl(*tags):
    return I("<waitl>", "waitl", need=tags)


def waitall(vm=True, lg=True):
    return I("<waitall>", "waitall", need=(vm, lg))


def barrier():
    return I("s_barrier", "bar")


def branch(text):
    return I(text, "br", rd="scc")


def priv(tile):
    return tile is not None and tile[0] == "X"


VM = ("dma", "vld", "vst")
VALUK = ("valu", "trans", "perm", "rfl")


class Prog:
    def __init__(self, name):
        self.name = name
        self.trace = []
        self.layout = []
        self.align = {}

    def block(self, label, ins, align=None):
        self.trace.append((label, ins))
        if label not in self.layout:
            self.layout.append(label)
        if align:
            self.align[label] = align

    def _resolve(self):
        nv, nl = {}, {}
        vq, lq = [], []
        for label, ins in self.trace:
            for k, i in enumerate(ins):
                key = (label, k)
                if i.kind in VM:
                    vq.append(i.tag)
                elif i.kind in ("ds", "dsw"):
                    lq.append(i.tag)
                elif i.kind == "waitall":
                    if i.need[0]:
                        vq = []
                    if i.need[1]:
                        lq = []
                elif i.kind in ("waitv", "waitl"):
                    q = vq if i.kind == "waitv" else lq
                    n = INF
                    for t in i.need:
                        if t is None:
                            continue
                        for pos in range(len(q) - 1, -1, -1):
                            if q[pos] == t:
                                n = min(n, len(q) - 1 - pos)
                                break
                    d = nv if i.kind == "waitv" else nl
                    d[key] = min(d.get(key, INF), n)
        self.nv, self.nl = nv, nl

    def _cap(self, kind, n):
        mx = 63 if kind == "waitv" else 15
        return min(n, mx) if n < INF else INF

    def _check(self):
        pads = {}
        errs = []
        for attempt in range(4):
            changed = False
            errs = []
            vq, lq = [], []
            t = 0
            lastw = {}
            lastc = {}
            lasts = {}
            nbar = 0
            lds_w = []
            lds_r = []
            for label, ins in self.trace:
                for k, i in enumerate(ins):
                    key = (label, k)
                    if i.kind in ("waitv", "waitl"):
                        n = self._cap(i.kind, (self.nv if i.kind == "waitv" else self.nl)[key])
                        if n >= INF:
                            continue
                        q = vq if i.kind == "waitv" else lq
                        while len(q) > n:
                            o = q.pop(0)
                            if o[1] is not None:
                                o[1][3] = nbar
                        t += 1
                        continue
                    if i.kind == "waitall":
                        for on, q in zip(i.need, (vq, lq)):
                            if on:
                                while q:
                                    o = q.pop(0)
                                    if o[1] is not None:
                                        o[1][3] = nbar
                        t += 1
                        continue
                    t += pads.get(key, 0)
                    need = 0

                    def req(since, n):
                        nonlocal need
                        have = t - since - 1
                        if have < n:
                            need = max(need, n - have)

                    for r in i.rd:
                        w = lastw.get(r)
                        if w:
                            wt, wk, wi = w
                            if wk in VALUK and r[0] in "va" and r != "vcc":
                                if i.kind == "mfma":
                                    req(wt, 2)
                                if i.kind == "perm":
                                    req(wt, 2)
                                if i.kind == "rfl":
                                    req(wt, 1)
                                if wk == "trans" and i.kind in ("valu", "perm", "rfl"):
                                    req(wt, 1)
                            if wk in VALUK and (r[0] == "s" or r == "vcc") and r != "scc":
                                if i.kind in VM:
                                    req(wt, 5)
                                if i.kind in VALUK:
                                    req(wt, 2)
                                if i.kind in ("salu", "br"):
                                    req(wt, 4)
                            if wk == "mfma":
                                if i.kind == "mfma":
                                    if r in i.cin and i.cin == wi.wr and r not in (i.rd - i.cin):
                                        pass
                                    elif r in i.cin:
                                        req(wt, 6)
                                    else:
                                        req(wt, 8)
                                else:
                                    req(wt, 8)
                            if r == "m0" and i.kind == "dma":
                                req(wt, 1)
                    for r in i.wr:
                        w = lastw.get(r)
                        if w and w[1] == "mfma" and i.kind != "mfma":
                            req(w[0], 8)
                        if w and w[1] == "mfma" and i.kind == "mfma" and i.wr != w[2].wr:
                            req(w[0], 6)
                        if r in lastc and i.kind in VALUK:
                            req(lastc[r], 3)
                        if r in lasts:
                            req(lasts[r], 2)
                    if need:
                        pads[key] = pads.get(key, 0) + need
                        t += need
                        changed = True
                    for q, nm in ((vq, "vm"), (lq, "lgkm")):
                        for o in q:
                            bad = o[0].wr & (i.rd | i.wr)
                            if bad:
                                errs.append("%s[%d] %s touches pending %s dest %s of %s" % (label, k, i.text, nm, sorted(bad)[:2], o[0].text))
                    rec = None
                    if i.lds is not None:
                        lo, hi, tile = i.lds
                        rec = [lo, hi, tile, None]
                        if i.kind == "ds":
                            if tile is not None:
                                cover = [w for w in lds_w if w[0] < hi and lo < w[1]]
                                if not cover:
                                    errs.append("%s[%d] %s reads LDS never written (%s)" % (label, k, i.text, tile))
                                for w in cover:
                                    if w[2] != tile:
                                        errs.append("%s[%d] %s expects %s but slot holds %s" % (label, k, i.text, tile, w[2]))
                                    elif w[3] is None or (w[3] >= nbar and not priv(tile)):
                                        errs.append("%s[%d] %s reads %s before landed+barrier" % (label, k, i.text, tile))
                                lds_r.append(rec)
                            else:
                                rec = None
                        else:
                            for rr in lds_r:
                                if rr[0] < hi and lo < rr[1] and (rr[3] is None or (rr[3] >= nbar and not (priv(tile) and priv(rr[2])))):
                                    errs.append("%s[%d] %s (%s) overwrites %s still being read" % (label, k, i.text, tile, rr[2]))
                            lds_r[:] = [rr for rr in lds_r if not (rr[0] < hi and lo < rr[1])]
                            for w in lds_w:
                                if w[0] < hi and lo < w[1] and w[2] != tile and (w[3] is None or (w[3] >= nbar and not (priv(tile) and priv(w[2])))):
                                    errs.append("%s[%d] %s (%s) overwrites %s still landing" % (label, k, i.text, tile, w[2]))
                            lds_w[:] = [w for w in lds_w if not (w[0] < hi and lo < w[1] and w[2] != tile)]
                            lds_w.append(rec)
                    if i.kind in VM:
                        vq.append((i, rec))
                        if len(vq) > 63:
                            o = vq.pop(0)
                            if o[1] is not None:
                                o[1][3] = nbar
                    elif i.kind in ("ds", "dsw"):
                        lq.append((i, rec))
                        if len(lq) > 15:
                            errs.append("%s[%d] more than 15 LDS ops outstanding" % (label, k))
                            lq.pop(0)
                    if i.kind == "bar":
                        nbar += 1
                    for r in i.wr:
                        lastw[r] = (t + i.states - 1, i.kind, i)
                    for r in i.cin:
                        lastc[r] = t
                    for r in i.sdata:
                        lasts[r] = t
                    t += i.states
            if not changed:
                break
        self.pads = pads
        return errs

    def emit(self):
        first = {}
        for label, ins in self.trace:
            if label not in first:
                first[label] = ins
            else:
                a = first[label]
                assert len(a) == len(ins), "block %s differs in length %d vs %d" % (label, len(a), len(ins))
                for x, y in zip(a, ins):
                    assert x.text == y.text, "block %s differs: %s | %s" % (label, x.text, y.text)
        self._resolve()
        errs = self._check()
        if errs:
            for e in errs[:30]:
                print("CHECK:", e)
            raise SystemExit("%d check errors in %s" % (len(errs), self.name))
        out = []
        self.stats = {}
        for label in self.layout:
            if label in self.align:
                out.append(".p2align %d" % self.align[label])
            out.append("%s:" % label)
            ins = first[label]
            k = 0
            npad = 0
            while k < len(ins):
                i = ins[k]
                key = (label, k)
                if i.kind in ("waitv", "waitl"):
                    parts = {}
                    while k < len(ins) and ins[k].kind in ("waitv", "waitl") and ins[k].kind not in parts:
                        j = ins[k]
                        n = self._cap(j.kind, (self.nv if j.kind == "waitv" else self.nl)[(label, k)])
                        if n < INF:
                            out.append("    s_waitcnt %s(%d)" % ("vmcnt" if j.kind == "waitv" else "lgkmcnt", n))
                        parts[j.kind] = n
                        k += 1
                    continue
                if i.kind == "waitall":
                    out.append("    s_waitcnt " + " ".join(x for on, x in zip(i.need, ("vmcnt(0)", "lgkmcnt(0)")) if on))
                    k += 1
                    continue
                p = self.pads.get(key, 0)
                npad += p
                while p > 0:
                    q = min(p, 16)
                    out.append("    s_nop %d" % (q - 1))
                    p -= q
                out.append("    " + i.text)
                k += 1
            self.stats[label] = (len(ins), sum(1 for x in ins if x.kind == "mfma"), npad)
        return "\n".join(out) + "\n"


class Gaps:
    def __init__(self, mf):
        self.mf = mf
        n = len(mf)
        self.s = [[] for _ in range(n)]
        self.m = [None] * n
        self.v = [[] for _ in range(n)]
        self.pre = []

    def cost(self, g):
        c = 1 if self.m[g] is not None else 0
        for x in self.v[g]:
            c += 2 if x.kind == "trans" else 1
        return c

    def put_s(self, g, *ins):
        self.s[g].extend(ins)

    def put_m(self, g, i):
        while self.m[g] is not None or self.cost(g) > 1:
            g += 1
        self.m[g] = i
        return g

    def put_v(self, g, i, limit=None):
        w = 2 if i.kind == "trans" else 1
        while self.cost(g) + w > 2:
            g += 1
        if limit is not None:
            assert g <= limit, "no room for %s before gap %d" % (i.text, limit)
        self.v[g].append(i)
        return g

    def flat(self, lo=0, hi=None):
        out = list(self.pre) if lo == 0 else []
        for g in range(lo, len(self.mf) if hi is None else hi):
            if self.mf[g] is not None:
                out.append(self.mf[g])
            out.extend(self.s[g])
            if self.m[g] is not None:
                out.append(self.m[g])
            out.extend(self.v[g])
        return out
```

```python
import math, struct, sys
from asmgen import *

NAME = "concat_heads__gqa_block_cached__mha_block_cached__near_ridge"
CFG = dict(kv_flags="nt", w_flags="", x_flags="", ost_flags="", old_flags="", wo_flags="", pst_flags="", pld_flags="",
           stamps=False, dbg="", rot2="1", rot1="1", xdelay="100", k0at="5", v0at="2", xpace="0")

KB, VB = 0, 73728
SLOT2 = 24576
WRING, WSLOT, NW1 = 98304, 12320, 5
WS_O = 0
WS_P = 2 * 16 * 32 * 61440
WS_T = WS_P + 4 * 6553600
WS_SIZE = 440664064


def f32bits(x):
    return struct.unpack("<I", struct.pack("<f", x))[0]


SCALE = f32bits(math.log2(math.e) / math.sqrt(192.0))


def V(op, d, *s, **k):
    return valu(op, d, *s, **k)


def S(op, d, *s):
    return salu(op, d, *s)


def decode_wg():
    return [
        V("v_readfirstlane_b32", "s28", "v0"),
        S("s_and_b32", "s48", "s2", 7),
        S("s_lshr_b32", "s49", "s2", 3),
        S("s_lshr_b32", "s44", "s48", 2),
        S("s_and_b32", "s45", "s48", 1),
        S("s_lshl_b32", "s45", "s45", 2),
        S("s_and_b32", "s50", "s49", 3),
        S("s_add_u32", "s45", "s45", "s50"),
        S("s_lshr_b32", "s46", "s49", 2),
        S("s_lshr_b32", "s47", "s48", 1),
        S("s_and_b32", "s47", "s47", 1),
        S("s_lshr_b32", "s28", "s28", 6),
    ]


def srd(base, lo, hi, off, nrec):
    return [
        S("s_add_u32", "s%d" % base, lo, off),
        S("s_addc_u32", "s%d" % (base + 1), hi, 0),
        S("s_mov_b32", "s%d" % (base + 2), nrec),
        S("s_mov_b32", "s%d" % (base + 3), "0x20000"),
    ]


def lane_rowchunk(p, vrow, vc, vl):
    return [
        V("v_add_u32", vc, p * 64, vl),
        V("v_mul_u32_u24", vrow, 2731, vc),
        V("v_lshrrev_b32", vrow, 16, vrow),
        V("v_mul_u32_u24", "v30", 24, vrow),
        V("v_sub_u32", vc, vc, "v30"),
    ]


def stamp(n):
    if not CFG["stamps"]:
        return []
    return [
        raw("s_memtime s[92:93]", wr="s[92:93]"),
        raw("s_memrealtime s[94:95]", wr="s[94:95]"),
        waitall(False, True),
        V("v_writelane_b32", "v0", "s92", 0),
        raw("s_mov_b64 exec, 1"),
        raw("s_nop 4"),
        I("buffer_store_dword v0, off, s[96:99], s100", "vst", rd=["v0"], tag="stamp"),
        raw("s_nop 2"),
        V("v_writelane_b32", "v0", "s94", 0),
        raw("s_nop 2"),
        I("buffer_store_dword v0, off, s[96:99], s100 offset:4", "vst", rd=["v0"], tag="stamp"),
        raw("s_nop 2"),
        V("v_writelane_b32", "v0", "0", 0),
        raw("s_mov_b64 exec, -1"),
        S("s_add_u32", "s100", "s100", 8),
        raw("s_nop 4"),
    ]


def stamp_setup(wslo, wshi, kidx):
    if not CFG["stamps"]:
        return []
    return srd(96, wslo, wshi, WS_T + kidx * 256 * 8 * 256, 256 * 8 * 256) + [
        S("s_lshl_b32", "s100", "s2", 3), S("s_add_u32", "s100", "s100", "s28"), S("s_lshl_b32", "s100", "s100", 8)]


vX, vWd, vWr, vKV, vL16 = "v1", ["v2", "v3", "v4"], ["v5", "v6"], ["v7", "v8", "v9"], "v0"
vKr, vVr, vXr = ["v10", "v201"], ["v11", "v202", "v203", "v204"], ["v12", "v13"]
SM = 52
sX, sW, sK, sV, sO = "s[8:11]", "s[12:15]", "s[16:19]", "s[20:23]", "s[24:27]"
XQ = ["0", "s38", "s39", "s40", "s41"]
QACC, QB, ZB, LB = 16, 16, 136, 196
FR = 240


def XREC():
    return 0 if "noX" in CFG["dbg"] else 102400


def frag(n):
    return FR + 4 * (n % 4)


def k1_setup():
    c = []
    c += [S("s_cmp_ge_u32", "s2", 256), branch("s_cbranch_scc1 A_end")]
    c += [raw("s_load_dwordx8 s[52:59], s[0:1], 0", wr="s[52:59]"),
          raw("s_load_dwordx8 s[60:67], s[0:1], 40", wr="s[60:67]"),
          raw("s_load_dwordx2 s[68:69], s[0:1], 96", wr="s[68:69]")]
    c += decode_wg()
    c += [V("v_and_b32", "v20", 63, "v0")]
    c += [raw("s_waitcnt lgkmcnt(0)")]
    c += [S("s_cmp_eq_u32", "s44", 0)]
    for k in range(4):
        c += [S("s_cselect_b64", "s[%d:%d]" % (52 + 2 * k, 53 + 2 * k), "s[%d:%d]" % (52 + 2 * k, 53 + 2 * k), "s[%d:%d]" % (60 + 2 * k, 61 + 2 * k))]
    c += [S("s_lshr_b32", "s70", "s28", 1), S("s_and_b32", "s71", "s28", 1),
          S("s_lshl_b32", "s72", "s45", 1), S("s_add_u32", "s72", "s72", "s70"),
          S("s_lshl_b32", "s73", "s47", 3), S("s_add_u32", "s73", "s73", "s46"), S("s_lshl_b32", "s73", "s73", 1)]
    c += [S("s_mul_i32", "s74", "s72", 204800), S("s_mul_i32", "s75", "s71", 102400), S("s_add_u32", "s74", "s74", "s75")]
    c += srd(8, "s52", "s53", "s74", XREC())
    c += [S("s_mul_i32", "s74", "s73", 384), S("s_sub_u32", "s75", 640 * 12288, "s74")]
    c += srd(12, "s58", "s59", "s74", "s75")
    c += [S("s_lshl_b32", "s74", "s72", 5), S("s_add_u32", "s76", "s74", "s73"), S("s_mul_i32", "s74", "s76", 196608)]
    c += srd(16, "s54", "s55", "s74", 196608)
    c += srd(20, "s56", "s57", "s74", 196608)
    c += [S("s_lshl_b32", "s74", "s44", 9), S("s_add_u32", "s74", "s74", "s76"), S("s_mul_i32", "s74", "s74", 61440),
          S("s_mul_i32", "s75", "s71", 5120), S("s_add_u32", "s74", "s74", "s75"), S("s_add_u32", "s74", "s74", WS_O)]
    c += srd(24, "s68", "s69", "s74", 61440 - 5120)
    c += stamp_setup("s68", "s69", 0)
    if "noKV" in CFG["dbg"]:
        c += [S("s_mov_b32", "s18", 0), S("s_mov_b32", "s22", 0)]
    if "noW" in CFG["dbg"]:
        c += [S("s_mov_b32", "s14", 384)]
    if "noSt" in CFG["dbg"]:
        c += [S("s_mov_b32", "s26", 0)]
    c += [S("s_mul_i32", "s31", "s28", 3080), S("s_add_u32", "s31", "s31", WRING),
          S("s_mul_i32", "s33", "s28", 6144),
          S("s_add_u32", "s34", "s33", VB), S("s_add_u32", "s33", "s33", KB)]
    c += [S("s_mov_b32", "s42", hex(SCALE)), S("s_mov_b32", "s43", hex(SCALE)), S("s_mov_b32", "s30", 0)]
    c += [V("v_and_b32", "v21", 15, "v20"), V("v_lshrrev_b32", "v22", 4, "v20"),
          V("v_bfe_u32", "v23", "v20", 2, 2), V("v_and_b32", "v24", 3, "v20")]
    c += [V("v_lshrrev_b32", "v25", 3, "v20"), V("v_mul_u32_u24", "v25", 1280, "v25"), V("v_and_b32", "v26", 7, "v20"),
          V("v_lshlrev_b32", "v27", 1, "v22"), V("v_xor_b32", "v26", "v26", "v27"), V("v_lshl_add_u32", vX, "v26", 4, "v25")]
    c += [S("s_lshl_b32", "s38", "s28", 11), S("s_add_u32", "s38", "s38", 8192)]
    c += [V("v_lshlrev_b32", "v25", 7, "v21"), V("v_add_u32", "v25", "s38", "v25"),
          V("v_bfe_u32", "v26", "v21", 1, 2), V("v_lshlrev_b32", "v26", 1, "v26"), V("v_xor_b32", "v26", "v26", "v22"),
          V("v_lshl_add_u32", vXr[0], "v26", 4, "v25"), V("v_xor_b32", vXr[1], 64, vXr[0])]
    c += [S("s_mul_i32", "s74", "s28", 8 * 12288), S("s_mul_i32", "s75", "s71", 6144)]
    for p in range(3):
        c += lane_rowchunk(p, "v25", "v26", "v20")
        c += [V("v_bfe_u32", "v27", "v25", 1, 1), V("v_lshlrev_b32", "v27", 2, "v27"), V("v_xor_b32", "v27", "v27", "v26"),
              V("v_mul_u32_u24", "v28", 12288, "v25"), V("v_lshl_add_u32", "v28", "v27", 4, "v28"),
              V("v_add_u32", "v28", "s74", "v28"), V("v_subrev_u32", vWd[p], p * 1024, "v28")]
        c += [V("v_bfe_u32", "v27", "v25", 1, 2), V("v_lshlrev_b32", "v27", 1, "v27"), V("v_xor_b32", "v27", "v27", "v20"),
              V("v_lshlrev_b32", "v27", 4, "v27"), V("v_add_u32", vKV[p], "s75", "v27")]
    c += [V("v_mul_u32_u24", "v25", 3080, "v22"), V("v_mul_u32_u24", "v26", 384, "v23"), V("v_add_u32", "v25", "v25", "v26"),
          V("v_add_u32", "v25", WRING, "v25"), V("v_lshrrev_b32", "v26", 1, "v23"), V("v_lshlrev_b32", "v26", 2, "v26")]
    for m in range(2):
        c += [V("v_or_b32", "v27", 4 * m, "v24"), V("v_xor_b32", "v27", "v27", "v26"), V("v_lshl_add_u32", vWr[m], "v27", 4, "v25")]
    c += [S("s_mul_i32", "s74", "s70", 12288), S("s_add_u32", "s75", "s74", VB), S("s_add_u32", "s74", "s74", KB)]
    c += [V("v_mul_u32_u24", "v25", 384, "v21"), V("v_add_u32", "v25", "s74", "v25"),
          V("v_bfe_u32", "v26", "v21", 1, 2), V("v_lshlrev_b32", "v26", 1, "v26")]
    c += [V("v_xor_b32", "v27", "v22", "v26"), V("v_lshl_add_u32", vKr[0], "v27", 4, "v25")]
    c += [V("v_lshrrev_b32", "v28", 2, "v20"), V("v_mul_u32_u24", "v25", 384, "v28"), V("v_add_u32", "v25", "s75", "v25"),
          V("v_and_b32", "v27", 1, "v24"), V("v_lshl_add_u32", "v25", "v27", 3, "v25"),
          V("v_bfe_u32", "v26", "v28", 1, 2), V("v_lshlrev_b32", "v26", 1, "v26"), V("v_lshrrev_b32", "v29", 1, "v24")]
    c += [V("v_xor_b32", "v27", "v29", "v26"), V("v_lshl_add_u32", vVr[0], "v27", 4, "v25")]
    c += [V("v_lshlrev_b32", vL16, 4, "v20")]
    if int(CFG["rot1"]):
        c += [S("s_and_b32", "s74", "s45", 3), S("s_add_u32", "s74", "s74", "s46")]
        for _ in range(2):
            c += [S("s_sub_u32", "s75", "s74", 5), S("s_cselect_b32", "s74", "s74", "s75")]
    else:
        c += [S("s_mov_b32", "s74", 0)]
    for m in range(5):
        c += [S("s_add_u32", "s75", "s74", m), S("s_sub_u32", "s76", "s75", 5), S("s_cselect_b32", "s75", "s75", "s76"),
              S("s_lshl_b32", "s%d" % (SM + m), "s75", 7), S("s_add_u32", "s%d" % (SM + 5 + m), "s%d" % (SM + m), 640)]
    return c


def wslot(i):
    return i % NW1


def w_dma(rnd, i):
    lo = WRING + wslot(i) * WSLOT
    pre = [S("s_add_u32", "m0", "s31", wslot(i) * WSLOT),
           S("s_mul_i32", "s32", "s%d" % (SM + (i >> 1)), 6144) if not i & 1 else S("s_add_u32", "s32", "s32", 32 * 12288)]
    d = [dma(vWd[p], sW, "s32", p * 1024, CFG["w_flags"], tag=("W", rnd, i), lds=(lo, lo + WSLOT, ("W", rnd, i))) for p in range(3)]
    return [(pre, d[0], []), ([], d[1], []), ([], d[2], [])]


def kv_dma(which, rnd, j, m0dyn=None):
    base, sb, so, sr = (KB, "s33", "s35", sK) if which == "K" else (VB, "s34", "s36", sV)
    slot = j % 3
    lo = base + slot * SLOT2
    tag = (which, rnd, j)
    out = []
    for u in range(2):
        for p in range(3):
            pre = []
            if p == 0:
                if m0dyn:
                    pre = [S("s_add_u32", "m0", m0dyn, u * 3072)]
                else:
                    pre = [S("s_add_u32", "m0", sb, slot * SLOT2 + u * 3072)]
            post = []
            if p == 2:
                post = [S("s_add_u32", so, so, 3072 if u == 0 else 12288 - 3072)]
            out.append((pre, dma(vKV[p], sr, so, p * 1024, CFG["kv_flags"], tag=tag, lds=(lo, lo + SLOT2, tag)), post))
    return out


NXB = 8


def xreg(i, qt):
    return R("a", (i % NXB) * 20 + qt * 4, 4)


def x_dma(rnd, m, qt, sig):
    tag = ("X", rnd, m, qt)
    out = []
    for u in range(2):
        pre = [S("s_add_u32", "m0", "s38", (sig - 1) * 8192)] if u == 0 else []
        pre += [S("s_add_u32", "s39", "s%d" % (SM + m), qt * 20480 + u * (10240 - 1024))]
        out.append((pre, dma(vX, sX, "s39", u * 1024, CFG["x_flags"], tag=tag, lds=(sig * 8192, sig * 8192 + 8192, tag)), []))
    return out


def x_read(rnd, m, qt, e, sig):
    return dsread("ds_read_b128", xreg(2 * m + e, qt), vXr[e], (sig - 1) * 8192, tag=("Xf", rnd, 2 * m + e, qt),
                  lds=(sig * 8192, sig * 8192 + 8192, ("X", rnd, m, qt)))


def q_pre(rnd):
    seq = w_dma(rnd, 0)
    for qt in range(5):
        seq += x_dma(rnd, 0, qt, 1 + qt)
    seq += w_dma(rnd, 1)
    for qt in range(3):
        seq += x_dma(rnd, 1, qt, 6 + qt)
    return seq + w_dma(rnd, 2) + w_dma(rnd, 3)


def w_reads(rnd, i, n, real=True):
    p, T = n >> 1, n & 1
    lo = WRING + wslot(i) * WSLOT
    out = []
    for half in range(2):
        off = wslot(i) * WSLOT + (p >> 1) * 128 + T * 8 + half * 1536
        out.append(dsread("ds_read_b64_tr_b16", R("a", frag(n) + 2 * half, 2), vWr[p & 1], off, tag=("Wf", rnd, i, n),
                          lds=(lo, lo + WSLOT, ("W", rnd, i) if real else None)))
    return out


def place_seq(G, g0, step, seq):
    g = g0
    for pre, m, post in seq:
        place_vm(G, g, pre, m, post)
        g += step


def place_vm(G, g, pre, m, post):
    gg = G.put_m(g, m)
    assert gg == g, "gap %d busy" % g
    for k, p in enumerate(pre):
        G.put_s(g - 3 + k if g >= 3 else 0, p)
    for p in post:
        G.put_s(g + 1, p)


def q_phase(rnd):
    mf = []
    for i in range(20):
        for n in range(12):
            p, T = n >> 1, n & 1
            for qt in range(5):
                d = R("v", QACC + (p * 5 + qt) * 8 + 4 * T, 4)
                mf.append(mfma(d, R("a", frag(n), 4), xreg(i, qt), "0" if i == 0 else d))
    G = Gaps(mf)
    for f in range(240):
        ff = f + 3
        if ff < 240:
            rd = w_reads(rnd, ff // 12, ff % 12)
            G.put_m(5 * f, rd[0])
            G.put_m(5 * f + 1, rd[1])
        if f < 239:
            tags = [("Wf", rnd, (f + 1) // 12, (f + 1) % 12)]
            if f % 12 == 11:
                tags += [("Xf", rnd, (f + 1) // 12, qt) for qt in range(5)]
            G.put_s(5 * f + 4, waitl(*tags))
    for i in range(19):
        G.put_s(60 * i + 44, waitv(("W", rnd, i + 1)), barrier())
    free = [True] * 240

    def take(n, cnt):
        while not all(free[n:n + cnt]):
            n += 1
        for k in range(cnt):
            free[n + k] = False
        return n

    def put(n, seq):
        for k, (pre, m, post) in enumerate(seq):
            place_vm(G, 5 * (n + k) + 3, pre, m, post)
    for i in range(16):
        put(take(12 * i + 9, 3), w_dma(rnd, i + 4))

    def put_kv(which, j, n):
        seq = kv_dma(which, rnd, j)
        a = take(n, 3)
        put(a, seq[:3])
        b = take(a + 3, 3)
        put(b, seq[3:])
        return b + 3
    k0at, v0at = int(CFG["k0at"]), int(CFG["v0at"])
    put_kv("V", 0, 12 * v0at)
    put_kv("K", 0, 12 * k0at)
    dvfree = [True] * 240
    delay = int(CFG["xdelay"])
    sfree = {sig: 0 for sig in range(1, 9)}
    last_rd = 0

    def reads(m, qt, sig, gmin, es=(0, 1)):
        nonlocal last_rd
        first = True
        for e in es:
            i = 2 * m + e
            g = max(gmin, last_rd, 60 * (i - NXB + 1))
            n = (g + 2) // 5
            while not dvfree[n]:
                n += 1
            dvfree[n] = False
            g = 5 * n + 2
            assert g < 60 * i - 5, "x fragment (%d,%d,%d) late: gap %d" % (m, qt, e, g)
            if first:
                G.put_s(g, waitv(("X", rnd, m, qt)))
                first = False
            assert G.put_m(g, x_read(rnd, m, qt, e, sig)) == g
            last_rd = g
        sfree[sig] = last_rd + 16
    for qt in range(5):
        reads(0, qt, 1 + qt, 0, es=(1,))
    for qt in range(3):
        reads(1, qt, 6 + qt, 30)
    nlast = 0
    pieces = [(1, 3), (1, 4)] + [(m, qt) for m in range(2, 10) for qt in range(5)]
    lastuse = {}
    for k, (m, qt) in enumerate(pieces):
        left = len(pieces) - k
        cand = [sg for sg in range(1, 9) if not (sg <= 2 and max(sfree[sg], 5 * nlast) + delay + 40 > 60 * (k0at - 1) + 44)]
        if left <= 3:
            cand = [6, 7, 8]
        sig = min(cand, key=lambda sg: (sfree[sg], sg))
        pace = max(0, 120 * m + 24 * qt - int(CFG["xpace"])) if (int(CFG["xpace"]) and m <= 5) else 0
        n = take(max(nlast, (max(sfree[sig], pace) + 4) // 5), 2)
        put(n, x_dma(rnd, m, qt, sig))
        nlast = n + 2
        dl = min(delay, 120 * m - 30 - 10 * (4 - qt) - (5 * n + 8))
        reads(m, qt, sig, 5 * n + 8 + dl)
        lastuse[sig] = sfree[sig]
        if rnd == 0 and CFG.get("verbose"):
            print("x piece", m, qt, "slot", sig, "dma gap", 5 * n + 3, "delay", dl, "read done", last_rd)

    def after_bar(g):
        i = (g - 44 + 59) // 60
        return 12 * i + 9
    n = put_kv("K", 1, after_bar(max(lastuse[sg] for sg in (3, 4, 5))))
    n = put_kv("K", 2, max(n, after_bar(max(lastuse[sg] for sg in (6, 7, 8)))))
    n = put_kv("V", 1, max(n, 12 * 17 + 9))
    if rnd == 0 and CFG.get("verbose"):
        print("vm slots:", "".join("." if f else "x" for f in free))
    head = [S("s_mov_b32", "s35", 0), S("s_mov_b32", "s36", 0),
            waitv(("W", rnd, 0), ("X", rnd, 0, 4)), barrier()] + \
        sum([w_reads(rnd, 0, n) for n in range(3)], []) + [x_read(rnd, 0, qt, 0, 1 + qt) for qt in range(5)] + [waitall(False, True)]
    return head + G.flat()


def k_read(rnd, j, n, real=True):
    kt, ds = n // 6, n % 6
    slot = j % 3
    lo = KB + slot * SLOT2
    return dsread("ds_read_b128", R("a", frag(n), 4), vKr[ds & 1], slot * SLOT2 + kt * 6144 + (ds >> 1) * 128, tag=("Kf", rnd, j, n),
                  lds=(lo, lo + SLOT2, ("K", rnd, j) if real else None))


def v_reads(rnd, j, t):
    slot = j % 3
    lo = VB + slot * SLOT2
    return [dsread("ds_read_b64_tr_b16", R("a", frag(t) + 2 * half, 2), vVr[t & 3], slot * SLOT2 + half * 6144 + (t >> 2) * 128,
                   tag=("Vf", rnd, j, t), lds=(lo, lo + SLOT2, ("V", rnd, j))) for half in range(2)]


def q_epilogue(rnd):
    c = []
    for n in range(30):
        s = QACC + 8 * n
        if n == 27:
            c += [V("v_xor_b32", vKr[1], 64, vKr[0])] + [V("v_xor_b32", vVr[m], 32 * m, vVr[0]) for m in range(1, 4)]
            c += [waitv(("K", rnd, 0)), barrier()]
            c += [k_read(rnd, 0, k) for k in range(3)]
        c += [V("v_pk_mul_f32", R("v", s + 2 * k, 2), R("v", s + 2 * k, 2), "s[42:43]") for k in range(4)]
        c += [V("v_cvt_pk_bf16_f32", "v%d" % (QB + 4 * n + k), "v%d" % (s + 2 * k), "v%d" % (s + 2 * k + 1)) for k in range(4)]
    c += [V("v_mov_b32", "v%d" % (LB + qt), 0) for qt in range(5)]
    c += [waitl(("Kf", rnd, 0, 0))]
    return c


def zbuf(k):
    return ZB + 20 * (k % 3)


def softmax_ops(n):
    t0, t1 = zbuf(n + 1), zbuf(n)
    ops = []
    for qt in range(5):
        for k in range(4):
            r = "v%d" % (t0 + 4 * qt + k)
            ops.append(("e", 0, qt, k, V("v_exp_f32", r, r)))
            ops.append(("a", 0, qt, k, V("v_add_f32", "v%d" % (LB + qt), "v%d" % (LB + qt), r)))
    for qt in range(5):
        for k in range(4):
            r = "v%d" % (t1 + 4 * qt + k)
            ops.append(("e", 1, qt, k, V("v_exp_f32", r, r)))
            ops.append(("a", 1, qt, k, V("v_add_f32", "v%d" % (LB + qt), "v%d" % (LB + qt), r)))
        a, b = t0 + 4 * qt, t1 + 4 * qt
        for k, (d, s) in enumerate(((b + 3, b + 2), (b + 2, b), (b, a), (b + 1, a + 2))):
            ops.append(("c", 1, qt, k, V("v_cvt_pk_bf16_f32", "v%d" % d, "v%d" % s, "v%d" % (s + 1))))
    return ops


_sm_plan = None


def softmax_plan():
    global _sm_plan
    if _sm_plan:
        return _sm_plan
    cost = [0] * 120
    for n in range(24):
        nn = (n + 3) % 24
        cost[5 * n] += 1
        if nn >= 12:
            cost[5 * n + 1] += 1
    for n in range(6):
        cost[5 * n + 3] += 1
        cost[5 * (n + 9) + 3] += 1
    cost[44] += 1
    cost[104] += 1
    cost[119] += 1
    plan = {}
    ops = softmax_ops(0)

    def put(g, w):
        while cost[g % 120] + w > 2:
            g += 1
        cost[g % 120] += w
        return g
    for kind, T, qt, k, _ in ops:
        if kind == "e":
            g0 = (25 if T == 0 else 55) + qt + 5
            plan[(kind, T, qt, k)] = put(g0, 2)
    last = {}
    for kind, T, qt, k, _ in ops:
        if kind == "a":
            g = put(max(plan[("e", T, qt, k)] + 1, last.get(qt, 0)), 1)
            plan[(kind, T, qt, k)] = g
            last[qt] = g
        elif kind == "c":
            g = put(last[qt], 1)
            plan[(kind, T, qt, k)] = g
            last[qt] = g
    assert max(plan.values()) <= 120 + 27, max(plan.values())
    _sm_plan = plan
    return plan


def a_step(rnd, j):
    hasqk, haspv = j < 15, j >= 0
    mf = []
    for n in range(12):
        kt, ds = n // 6, n % 6
        for qt in range(5):
            d = R("v", (zbuf(j + 2) if kt == 0 else zbuf(j + 1)) + 4 * qt, 4)
            mf.append(mfma(d, R("a", frag(n), 4), R("v", QB + (ds * 5 + qt) * 4, 4), "0" if ds == 0 else d) if hasqk else None)
    for t in range(12):
        for qt in range(5):
            d = R("a", (t * 5 + qt) * 4, 4)
            mf.append(mfma(d, R("a", frag(t), 4), R("v", zbuf(j) + 4 * qt, 4), "0" if j == 0 else d) if haspv else None)
    G = Gaps(mf)
    for n in range(24):
        nn = n + 3
        if nn < 12:
            if hasqk:
                G.put_m(5 * n, k_read(rnd, j + 1, nn))
        elif nn < 24:
            if haspv:
                rd = v_reads(rnd, j, nn - 12)
                G.put_m(5 * n, rd[0])
                G.put_m(5 * n + 1, rd[1])
        elif j < 15:
            G.put_m(5 * n, k_read(rnd, j + 2, nn - 24, real=(j + 2 < 16)))
        nx = n + 1
        tag = ("Kf", rnd, j + 1, nx) if nx < 12 else ("Vf", rnd, j, nx - 12) if nx < 24 else ("Kf", rnd, j + 2, 0)
        G.put_s(5 * n + 4, waitl(tag))
    if haspv:
        if j == 15:
            G.put_s(44, waitall(False, True))
        G.put_s(44, waitv(("V", rnd, j), ("V", rnd, 16) if j == 15 else None), barrier())
    if j < 15:
        G.put_s(104, waitv(("K", rnd, j + 2)), barrier())
    if 0 <= j < 15:
        place_seq(G, 3, 5, kv_dma("K", rnd, j + 3))
        place_seq(G, 48, 5, kv_dma("V", rnd, j + 2))
    if j == 15:
        G.put_s(50, S("s_add_u32", "s12", "s12", 384), S("s_addc_u32", "s13", "s13", 0), S("s_sub_u32", "s14", "s14", 384),
                S("s_cmp_eq_u32", "s30", 0), S("s_cselect_b32", "s14", "s14", 0), S("s_cselect_b32", "s10", "s10", 0))
        place_seq(G, 63, 5, q_pre(rnd + 1)[:12])
    plan = softmax_plan()
    sched = []
    if j >= 0:
        sched += [(plan[o[:4]] - 120, o[4]) for o in softmax_ops(j) if plan[o[:4]] >= 120]
    if j < 15:
        sched += [(plan[o[:4]], o[4]) for o in softmax_ops(j + 1) if plan[o[:4]] < 120]
    for g, ins in sched:
        G.v[g].append(ins)
    ins = G.flat()
    if j == 0:
        ins += [S("s_mov_b32", "s29", 5)]
    if j > 0 and j % 3 == 2:
        ins += [S("s_sub_u32", "s29", "s29", 1), S("s_cmp_eq_u32", "s29", 0), branch("s_cbranch_scc1 A_s15")]
    if j > 0 and j % 3 == 0 and j < 15:
        ins += [branch("s_branch A_s1")]
    return ins


def a_epilogue(rnd):
    c = []
    for qt in range(5):
        c += [V("v_mov_b32", "v%d" % (210 + qt), "v%d" % (LB + qt))]
    for qt in range(5):
        c += [V("v_permlane32_swap_b32", "v%d" % (210 + qt), "v%d" % (LB + qt))]
    for qt in range(5):
        c += [V("v_add_f32", "v%d" % (LB + qt), "v%d" % (LB + qt), "v%d" % (210 + qt))]
    for qt in range(5):
        c += [V("v_mov_b32", "v%d" % (210 + qt), "v%d" % (LB + qt))]
    for qt in range(5):
        c += [V("v_permlane16_swap_b32", "v%d" % (210 + qt), "v%d" % (LB + qt))]
    for qt in range(5):
        c += [V("v_add_f32", "v%d" % (LB + qt), "v%d" % (LB + qt), "v%d" % (210 + qt))]
    for qt in range(5):
        c += [V("v_rcp_f32", "v%d" % (220 + 2 * qt), "v%d" % (LB + qt))]
    xl = q_pre(rnd + 1)[12:]
    n = 0
    for p in range(6):
        c += [S("s_mov_b32", "s48", p * 10240), S("s_mov_b32", "s49", p * 10240 + 4096)]
        for qt in range(5):
            t = 16 + 12 * (n % 8)
            for T in range(2):
                for k in range(4):
                    c += [V("v_accvgpr_read_b32", "v%d" % (t + 4 * T + k), "a%d" % (((2 * p + T) * 5 + qt) * 4 + k))]
            if xl:
                pre, d, post = xl.pop(0)
                c += pre + [d] + post
            for k in range(4):
                c += [V("v_pk_mul_f32", R("v", t + 2 * k, 2), R("v", t + 2 * k, 2), R("v", 220 + 2 * qt, 2), mods="op_sel_hi:[1,0]")]
            for k in range(4):
                c += [V("v_cvt_pk_bf16_f32", "v%d" % (t + 8 + k), "v%d" % (t + 2 * k), "v%d" % (t + 2 * k + 1))]
            c += [vstore(R("v", t + 8, 4), vL16, sO, "s48" if qt < 4 else "s49", qt * 1024 if qt < 4 else 0, CFG["ost_flags"], tag="O")]
            n += 1
    c += [S("s_add_u32", "s16", "s16", 196608), S("s_addc_u32", "s17", "s17", 0),
          S("s_add_u32", "s20", "s20", 196608), S("s_addc_u32", "s21", "s21", 0),
          S("s_add_u32", "s24", "s24", 61440), S("s_addc_u32", "s25", "s25", 0)]
    c += stamp(5)
    c += [S("s_add_u32", "s30", "s30", 1), S("s_cmp_eq_u32", "s30", 1), branch("s_cbranch_scc1 A_q0")]
    return c


def gen_k1():
    P = Prog("attn")
    c = k1_setup()
    c += stamp(0)
    for pre, d, post in q_pre(0):
        c += pre + [d] + post
    P.block("A_setup", c)
    for rnd in range(2):
        P.block("A_q0", q_phase(rnd), align=6)
        P.block("A_qe", stamp(1) + q_epilogue(rnd) + stamp(2))
        for j in range(-1, 16):
            lab = "A_sm1" if j < 0 else "A_s0" if j == 0 else "A_s15" if j == 15 else "A_s%d" % (1 + (j - 1) % 3)
            P.block(lab, a_step(rnd, j), align=(6 if j in (1, 15) else None))
        P.block("A_ae", stamp(4) + a_epilogue(rnd))
    P.block("A_end", [raw("s_endpgm")])
    return P


NW2 = 6
OACC = 16


def k2_setup():
    c = []
    c += [S("s_cmp_ge_u32", "s2", 256), branch("s_cbranch_scc1 B_end")]
    c += [raw("s_load_dwordx2 s[52:53], s[0:1], 32", wr="s[52:53]"),
          raw("s_load_dwordx2 s[54:55], s[0:1], 72", wr="s[54:55]"),
          raw("s_load_dwordx2 s[68:69], s[0:1], 96", wr="s[68:69]")]
    c += decode_wg()
    c += [V("v_and_b32", "v20", 63, "v0")]
    c += [raw("s_waitcnt lgkmcnt(0)")]
    c += [S("s_cmp_eq_u32", "s44", 0), S("s_cselect_b64", "s[52:53]", "s[52:53]", "s[54:55]")]
    c += [S("s_lshr_b32", "s70", "s28", 1), S("s_and_b32", "s71", "s28", 1),
          S("s_lshl_b32", "s72", "s45", 1), S("s_add_u32", "s72", "s72", "s70"),
          S("s_lshl_b32", "s73", "s47", 1), S("s_lshr_b32", "s74", "s46", 2), S("s_add_u32", "s73", "s73", "s74"),
          S("s_and_b32", "s74", "s46", 3), S("s_and_b32", "s75", "s74", 1)]
    c += [S("s_mul_i32", "s76", "s73", 1536 * 1280), S("s_mul_i32", "s77", "s74", 320), S("s_lshl_b32", "s78", "s75", 6),
          S("s_sub_u32", "s77", "s77", "s78"), S("s_add_u32", "s76", "s76", "s77"), S("s_sub_u32", "s77", 1536 * 1280, "s77")]
    c += srd(12, "s52", "s53", "s76", "s77")
    c += [S("s_lshl_b32", "s76", "s44", 4), S("s_add_u32", "s79", "s76", "s72"), S("s_lshl_b32", "s76", "s79", 2),
          S("s_add_u32", "s76", "s76", "s73"), S("s_mul_i32", "s76", "s76", 8 * 61440),
          S("s_mul_i32", "s77", "s71", 5120), S("s_add_u32", "s76", "s76", "s77"), S("s_add_u32", "s76", "s76", WS_O)]
    c += srd(8, "s68", "s69", "s76", 8 * 61440 - 5120)
    c += [S("s_lshl_b32", "s76", "s79", 1), S("s_add_u32", "s76", "s76", "s71"), S("s_lshl_b32", "s76", "s76", 2),
          S("s_add_u32", "s76", "s76", "s74"), S("s_mul_i32", "s76", "s76", 25600), S("s_mul_i32", "s77", "s73", 6553600),
          S("s_add_u32", "s76", "s76", "s77"), S("s_add_u32", "s76", "s76", WS_P)]
    c += srd(24, "s68", "s69", "s76", 25600)
    c += stamp_setup("s68", "s69", 1)
    if "noW" in CFG["dbg"]:
        c += [S("s_mov_b32", "s14", 0)]
    if "noX" in CFG["dbg"]:
        c += [S("s_mov_b32", "s10", 0)]
    c += [S("s_mul_i32", "s31", "s28", 3080)]
    c += [V("v_lshrrev_b32", "v22", 4, "v20"), V("v_bfe_u32", "v23", "v20", 2, 2), V("v_and_b32", "v24", 3, "v20")]
    c += [S("s_mul_i32", "s76", "s28", 4 * 1280)]
    for p in range(3):
        c += lane_rowchunk(p, "v25", "v26", "v20")
        c += [V("v_bfe_u32", "v27", "v25", 1, 1), V("v_lshlrev_b32", "v27", 2, "v27"), V("v_xor_b32", "v27", "v27", "v26"),
              V("v_lshrrev_b32", "v28", 2, "v25"), V("v_mul_u32_u24", "v28", 12, "v28"), V("v_add_u32", "v28", "v28", "v25"),
              V("v_mul_u32_u24", "v28", 1280, "v28"), V("v_lshl_add_u32", "v28", "v27", 4, "v28"),
              V("v_add_u32", "v28", "s76", "v28"), V("v_subrev_u32", vWd[p], p * 1024, "v28")]
    c += [V("v_mul_u32_u24", "v25", 3080, "v22"), V("v_mul_u32_u24", "v26", 384, "v23"), V("v_add_u32", "v25", "v25", "v26"),
          V("v_lshrrev_b32", "v26", 1, "v23"), V("v_lshlrev_b32", "v26", 2, "v26")]
    for m in range(2):
        c += [S("s_add_u32", "s76", "s75", m), S("s_and_b32", "s77", "s76", 1), S("s_lshl_b32", "s77", "s77", 2),
              S("s_lshr_b32", "s76", "s76", 1), S("s_lshl_b32", "s76", "s76", 7),
              V("v_or_b32", "v27", "s77", "v24"), V("v_xor_b32", "v27", "v27", "v26"), V("v_lshl_add_u32", "v27", "v27", 4, "v25"),
              V("v_add_u32", vWr[m], "s76", "v27")]
    c += [V("v_lshlrev_b32", vL16, 4, "v20")]
    sh = int(CFG["rot2"])
    if sh:
        c += [S("s_and_b32", "s80", "s45", 3), S("s_xor_b32", "s80", "s80", "s74"), S("s_lshl_b32", "s80", "s80", sh - 1)]
    else:
        c += [S("s_mov_b32", "s80", 0)]
    c += [S("s_mov_b32", "s81", 0), S("s_mul_i32", "s32", "s80", 32 * 1280), S("s_mul_i32", "s35", "s80", 10240),
          S("s_add_u32", "s36", "s35", 4096)]
    return c


def k2_advance():
    return [S("s_add_u32", "s81", "s81", 1), S("s_xor_b32", "s82", "s81", "s80"), S("s_mul_i32", "s32", "s82", 32 * 1280),
            S("s_mul_i32", "s35", "s82", 10240), S("s_add_u32", "s36", "s35", 4096)]


def wo_dma(i):
    lo = (i % NW2) * WSLOT
    pre = [S("s_add_u32", "m0", "s31", lo)]
    d = [dma(vWd[p], sW, "s32", p * 1024, CFG["wo_flags"], tag=("W", i), lds=(lo, lo + WSLOT, ("W", i))) for p in range(3)]
    post = [S("s_add_u32", "s32", "s32", 32 * 1280)]
    return pre, d, post


def o_loads(i):
    out = [vload(R("a", (i % NW2) * 20 + qt * 4, 4), vL16, sX, "s35" if qt < 4 else "s36", qt * 1024 if qt < 4 else 0,
                 CFG["old_flags"], tag=("O", i)) for qt in range(5)]
    post = [S("s_add_u32", "s35", "s35", 10240), S("s_add_u32", "s36", "s36", 10240)]
    return out, post


def wo_reads(i, n, real=True):
    p, T = n >> 1, n & 1
    lo = (i % NW2) * WSLOT
    return [dsread("ds_read_b64_tr_b16", R("a", frag(10 * i + n) + 2 * half, 2), vWr[p & 1], lo + (p >> 1) * 128 + T * 8 + half * 1536,
                   tag=("Wf", i, n), lds=(lo, lo + WSLOT, ("W", i) if real else None)) for half in range(2)]


def o_step(i):
    mf = []
    for n in range(10):
        p, T = n >> 1, n & 1
        for qt in range(5):
            d = R("v", OACC + (qt * 5 + p) * 8 + 4 * T, 4)
            mf.append(mfma(d, R("a", frag(10 * i + n), 4), R("a", (i % NW2) * 20 + qt * 4, 4), "0" if i == 0 else d))
    G = Gaps(mf)
    for n in range(10):
        nn = n + 3
        rd = wo_reads(i, nn) if nn < 10 else wo_reads(i + 1, nn - 10, real=(i + 1 < 48))
        G.put_m(5 * n, rd[0])
        G.put_m(5 * n + 1, rd[1])
        G.put_s(5 * n + 4, waitl(("Wf", i, n + 1) if n < 9 else ("Wf", i + 1, 0)))
    G.put_s(34, waitv(("W", i + 1), ("O", i + 1)), barrier())
    pre, d, post = wo_dma(i + NW2 - 1)
    place_seq(G, 38, 5, [(pre, d[0], []), ([], d[1], []), ([], d[2], [])])
    ld, post = o_loads(i + NW2 - 1)
    place_seq(G, 8, 5, [([], ld[k], []) for k in range(5)])
    for k, a in enumerate(k2_advance()):
        G.put_s((0, 1, 2, 3, 5)[k], a)
    ins = G.flat()
    if i == 0:
        ins = [S("s_mov_b32", "s29", 8), waitv(("W", 0), ("O", 0)), barrier()] + sum([wo_reads(0, n) for n in range(3)], []) + \
              [waitl(("Wf", 0, 0))] + ins
    if i % 6 == 5:
        ins += [S("s_sub_u32", "s29", "s29", 1), S("s_cmp_eq_u32", "s29", 0), branch("s_cbranch_scc1 B_ep")]
    if i > 0 and i % 6 == 0:
        ins += [branch("s_branch B_k1")]
    return ins


def gen_k2():
    P = Prog("oproj")
    c = k2_setup()
    c += stamp(0)
    for i in range(NW2 - 1):
        pre, d, post = wo_dma(i)
        ld, post2 = o_loads(i)
        c += (k2_advance() if i else []) + pre + ld + d
    P.block("B_setup", c)
    for i in range(48):
        lab = "B_k0" if i == 0 else "B_k%d" % (1 + (i - 1) % 6)
        P.block(lab, o_step(i), align=(6 if i == 1 else None))
    c = stamp(1) + [waitall(False, True)]
    for n in range(25):
        s = OACC + 8 * n
        if n % 4 == 0:
            c += [S("s_mov_b32", "s48", n * 1024)]
        c += [V("v_cvt_pk_bf16_f32", "v%d" % (s + k), "v%d" % (s + 2 * k), "v%d" % (s + 2 * k + 1)) for k in range(4)]
        c += [vstore(R("v", s, 4), vL16, sO, "s48", (n % 4) * 1024, CFG["pst_flags"], tag="P")]
    c += stamp(2)
    P.block("B_ep", c, align=6)
    P.block("B_end", [raw("s_endpgm")])
    return P


def gen_k3():
    P = Prog("reduce")
    c = [S("s_cmp_ge_u32", "s2", 256), branch("s_cbranch_scc1 C_end")]
    c += [raw("s_load_dwordx2 s[52:53], s[0:1], 80", wr="s[52:53]"),
          raw("s_load_dwordx2 s[68:69], s[0:1], 96", wr="s[68:69]")]
    c += [V("v_readfirstlane_b32", "s28", "v0"), V("v_and_b32", "v1", 63, "v0"), V("v_lshlrev_b32", "v2", 4, "v1"),
          S("s_lshr_b32", "s28", "s28", 6)]
    c += [raw("s_waitcnt lgkmcnt(0)")]
    c += [S("s_mul_i32", "s44", "s2", 25600), S("s_mul_i32", "s45", "s28", 5120), S("s_add_u32", "s44", "s44", "s45"),
          S("s_add_u32", "s44", "s44", WS_P)]
    c += srd(8, "s68", "s69", "s44", 3 * 6553600 + 5120)
    for o in range(4):
        c += [S("s_mov_b32", "s%d" % (32 + 2 * o), o * 6553600), S("s_mov_b32", "s%d" % (33 + 2 * o), o * 6553600 + 4096)]
    for pp in range(5):
        for o in range(4):
            c += [vload(R("v", 16 + (pp * 4 + o) * 4, 4), "v2", sX, "s%d" % (32 + 2 * o + (pp == 4)), pp * 1024 if pp < 4 else 0,
                        CFG["pld_flags"], tag=("P", pp))]
    c += [S("s_and_b32", "s45", "s2", 3), S("s_mul_i32", "s45", "s45", 320),
          S("s_lshr_b32", "s46", "s2", 7), S("s_mul_i32", "s46", "s46", 1280), S("s_add_u32", "s45", "s45", "s46"),
          S("s_lshr_b32", "s46", "s2", 2), S("s_and_b32", "s46", "s46", 31), S("s_mul_i32", "s46", "s46", 5),
          S("s_add_u32", "s46", "s46", "s28"), S("s_mul_i32", "s46", "s46", 16 * 2560), S("s_add_u32", "s45", "s45", "s46"),
          S("s_sub_u32", "s46", 2560 * 2560, "s45")]
    c += srd(12, "s52", "s53", "s45", "s46")
    c += [V("v_and_b32", "v3", 15, "v1"), V("v_mul_u32_u24", "v3", 2560, "v3"), V("v_lshrrev_b32", "v4", 4, "v1"),
          V("v_lshl_add_u32", "v3", "v4", 4, "v3"), S("s_mov_b32", "s47", "0xffff0000")]
    for pp in range(5):
        c += [waitv(("P", pp))]
        for k in range(4):
            r = [16 + (pp * 4 + o) * 4 + k for o in range(4)]
            c += [V("v_lshlrev_b32", "v%d" % (6 + o), 16, "v%d" % r[o]) for o in range(4)]
            c += [V("v_and_b32", "v%d" % r[o], "s47", "v%d" % r[o]) for o in range(4)]
            c += [V("v_add_f32", "v6", "v6", "v7"), V("v_add_f32", "v8", "v8", "v9"),
                  V("v_add_f32", "v%d" % r[0], "v%d" % r[0], "v%d" % r[1]), V("v_add_f32", "v%d" % r[2], "v%d" % r[2], "v%d" % r[3]),
                  V("v_add_f32", "v6", "v6", "v8"), V("v_add_f32", "v%d" % r[0], "v%d" % r[0], "v%d" % r[2]),
                  V("v_cvt_pk_bf16_f32", "v%d" % r[0], "v6", "v%d" % r[0])]
        c += [vstore(R("v", 16 + pp * 16, 4), "v3", sW, "0", pp * 64, tag="out")]
    P.block("C_body", c)
    P.block("C_end", [raw("s_endpgm")])
    return P


def kd(name, vgpr, accum):
    return """.amdhsa_kernel %s
  .amdhsa_next_free_vgpr %d
  .amdhsa_next_free_sgpr 102
  .amdhsa_accum_offset %d
  .amdhsa_group_segment_fixed_size 0
  .amdhsa_kernarg_size 104
  .amdhsa_user_sgpr_count 2
  .amdhsa_user_sgpr_kernarg_segment_ptr 1
  .amdhsa_system_sgpr_workgroup_id_x 1
.end_amdhsa_kernel
""" % (name, vgpr, accum)


def generate(verbose=False):
    global _sm_plan
    _sm_plan = None
    ks = [("attn_kernel", gen_k1(), 512, 256, 256, 163840), ("oproj_kernel", gen_k2(), 512, 256, 256, NW2 * WSLOT),
          ("reduce_kernel", gen_k3(), 96, 96, 320, 0)]
    s = "; Two attention blocks (Q projection, softmax(QK^T)V, output projection), written with work/gen.py\n"
    for n, p, vg, ac, blk, lds in ks:
        s += "; @launch kernel=%s grid=(256,1,1) block=(%d,1,1) lds=%d\n" % (n, blk, lds)
    s += '.amdgcn_target "amdgcn-amd-amdhsa--gfx950"\n.text\n'
    for n, p, vg, ac, blk, lds in ks:
        s += ".globl %s\n.p2align 8\n.type %s,@function\n%s:\n" % (n, n, n)
        s += p.emit()
        if verbose:
            for lab, st in p.stats.items():
                print("%-10s instrs %4d mfma %4d nops %d" % (lab, *st))
    s += '.section .rodata,"a"\n'
    for n, p, vg, ac, blk, lds in ks:
        s += ".p2align 6\n" + kd(n, vg, ac)
    return s


if __name__ == "__main__":
    out = sys.argv[1] if len(sys.argv) > 1 else "cdna_kernels/%s.s" % NAME
    for a in sys.argv[2:]:
        k, v = a.split("=")
        CFG[k] = (v == "1") if k == "stamps" else v.replace("+", " ")
    open(out, "w").write(generate(verbose=True))
```

```python
def make_plan(cost, first=(30, 60), limit=147, verbose=False):
    best = None
    for lead in range(1, 8):
        for bias in range(0, 6):
            c = list(cost)
            plan = {}
            elems = [(T, qt, k) for T in range(2) for qt in range(5) for k in range(4)]
            nm = ne = na = 0
            cv = [(qt, k) for qt in range(5) for k in range(4)]
            nc = 0
            g = first[0]
            while (na < 40 or nc < 20) and g < 200:
                free = 2 - c[g % 120]

                def mul_ready():
                    return nm < 40 and g >= first[elems[nm][0]] + elems[nm][1]

                def exp_ready():
                    return ne < nm and plan[("m",) + elems[ne]] < g

                def add_ready():
                    return na < ne and plan[("e",) + elems[na]] < g

                def cvt_ready():
                    return nc < 20 and na >= 20 + 4 * cv[nc][0] + 4
                backlog = (ne - na) + (sum(1 for i in range(nc, 20) if na >= 24 + 4 * cv[i][0]))
                if free == 2 and exp_ready() and backlog <= bias + 2:
                    plan[("e",) + elems[ne]] = g
                    ne += 1
                    free = 0
                while free > 0:
                    if mul_ready() and nm - ne < lead:
                        plan[("m",) + elems[nm]] = g; nm += 1
                    elif add_ready():
                        plan[("a",) + elems[na]] = g; na += 1
                    elif cvt_ready():
                        plan[("c", 1) + cv[nc]] = g; nc += 1
                    elif mul_ready():
                        plan[("m",) + elems[nm]] = g; nm += 1
                    elif free == 2 and exp_ready():
                        plan[("e",) + elems[ne]] = g; ne += 1; free -= 1
                    else:
                        break
                    free -= 1
                g += 1
            end = max(plan.values())
            if best is None or end < best[0]:
                best = (end, plan, lead, bias)
    if verbose:
        print("softmax plan ends at", best[0], "lead", best[2], "bias", best[3])
    assert best[0] <= limit, best[0]
    return best[1]


def make_plan_pk(cost, first=(31, 61), limit=147, perk=1, pkmul=True, pkadd=True, nomul=False):
    c = list(cost)
    pk = [0] * 120
    plan = {}

    def put(g, w):
        while c[g % 120] + w > 2:
            g += 1
        c[g % 120] += w
        return g

    def putpk(g):
        while pk[g % 120] >= perk:
            g += 1
        pk[g % 120] += 1
        return g
    span = (limit - 8 - first[0]) / 20.0
    last = {}
    ge = 0
    for idx in range(20):
        T, qt, h = idx // 10, (idx % 10) // 2, idx % 2
        g = max(first[T] + qt, int(first[0] + span * (idx - (idx % perk if perk > 1 else 0))))
        if nomul:
            gm = g - 1
        elif pkmul:
            gm = plan[("M", T, qt, h)] = putpk(g)
        else:
            for k in (2 * h, 2 * h + 1):
                gm = plan[("m", T, qt, k)] = put(g, 1)
        for k in (2 * h, 2 * h + 1):
            ge = plan[("e", T, qt, k)] = put(max(gm + 1, ge), 2)
        if pkadd:
            ga = max(ge + 1, last.get(qt, 0))
            if perk > 1:
                ga = max(ga, int(first[0] + span * (idx - idx % perk + perk)))
            last[qt] = plan[("A", T, qt, h)] = putpk(ga) if perk == 1 else ga
        else:
            for k in (2 * h, 2 * h + 1):
                last[qt] = plan[("a", T, qt, k)] = put(max(ge + 1, last.get(qt, 0)), 1)
        if T == 1 and h == 1:
            g = last[qt] + 1
            for k in range(4):
                g = plan[("c", 1, qt, k)] = put(g, 1)
    assert max(plan.values()) <= limit, max(plan.values())
    return plan


if __name__ == "__main__":
    cost = [0] * 120
    for n in range(24):
        nn = (n + 3) % 24
        cost[5 * n] += 1
        if nn >= 12:
            cost[5 * n + 1] += 1
    for n in range(6):
        cost[5 * n + 3] += 1
        cost[5 * (n + 9) + 3] += 1
    cost[44] += 1; cost[104] += 1; cost[119] += 1
    make_plan(cost, first=(31, 61), verbose=True)
```

```python
import math, struct, sys
from asmgen import *
from smplan import make_plan, make_plan_pk

NAME = "concat_heads__gqa_block_cached__mha_block_cached__near_ridge"
CFG = dict(kv_flags="nt", w_flags="", x_flags="", ost_flags="sc1", old_flags="sc1", wo_flags="", pst_flags="sc1", pld_flags="sc1",
           stamps=False, dbg="", rot2="1", rot1="1", xdelay="100", k0at="13", v0at="3", lolim="-40", hilim="40", snake="1",
           nd0="3", nd1="3", stsp="6", npre0="16", osig="14", opoll="17", nq="21", pf="1", pk="0")

KB, VB = 0, 73728
SLOT2 = 24576
WRING, WSLOT, NW1, NW2 = 98304, 12320, 5, 6
LFLAG = 160000
WS_O = 0
WS_P = 2 * 16 * 32 * 61440
WS_F = WS_P + 4 * 6553600
WS_T = WS_F + 16384


def f32bits(x):
    return struct.unpack("<I", struct.pack("<f", x))[0]


SCALE = f32bits(math.log2(math.e) / math.sqrt(192.0))


def V(op, d, *s, **k):
    return valu(op, d, *s, **k)


def S(op, d, *s):
    return salu(op, d, *s)


def srd(base, lo, hi, off, nrec):
    return [S("s_add_u32", "s%d" % base, lo, off), S("s_addc_u32", "s%d" % (base + 1), hi, 0),
            S("s_mov_b32", "s%d" % (base + 2), nrec), S("s_mov_b32", "s%d" % (base + 3), "0x20000")]


def lane_rowchunk(p, vrow, vc, vl, vt):
    return [V("v_add_u32", vc, p * 64, vl), V("v_mul_u32_u24", vrow, 2731, vc), V("v_lshrrev_b32", vrow, 16, vrow),
            V("v_mul_u32_u24", vt, 24, vrow), V("v_sub_u32", vc, vc, vt)]


vL16, vX, vWd, vWr, vKV = "v0", "v1", ["v2", "v3", "v4"], ["v5", "v6"], ["v7", "v8", "v9"]
vKr, vVr, vXr, vOne, vStamp = ["v10", "v13"], ["v11", "v206", "v207", "v208"], ["v12", "v13"], "v14", "v15"
QACC, QB, ZB, LB, MB, RCP, TMP = 16, 16, 136, 196, 215, 220, 230
OACC = 16
FR = 240
sC, sX, sW, sK, sV, sO = "s[4:7]", "s[8:11]", "s[12:15]", "s[16:19]", "s[20:23]", "s[24:27]"
sOL, sFp, sWo, sP, sOut, sFs = "s[44:47]", "s[48:51]", "s[64:67]", "s[68:71]", "s[72:75]", "s[76:79]"
SM = 52


def stamp():
    if not CFG["stamps"]:
        return []
    return [raw("s_memtime s[92:93]", wr="s[92:93]"), raw("s_memrealtime s[94:95]", wr="s[94:95]"),
            S("s_mov_b32", "s97", "m0"), S("s_mov_b32", "m0", "s96"), waitall(False, True),
            V("v_writelane_b32", vStamp, "s92", "m0"), S("s_add_u32", "m0", "s96", 1), nop(1),
            V("v_writelane_b32", vStamp, "s94", "m0"), S("s_add_u32", "s96", "s96", 2), S("s_mov_b32", "m0", "s97")]


def frag(n):
    return FR + 4 * (n % 4)


def qorder(n):
    return range(4, -1, -1) if (n & 1 and int(CFG["snake"])) else range(5)


def setup1():
    c = [S("s_cmp_ge_u32", "s2", 256), branch("s_cbranch_scc1 L_end")]
    c += [raw("s_load_dwordx16 s[64:79], s[0:1], 0", wr="s[64:79]"),
          raw("s_load_dwordx8 s[80:87], s[0:1], 64", wr="s[80:87]"),
          raw("s_load_dwordx2 s[88:89], s[0:1], 96", wr="s[88:89]")]
    if CFG["stamps"]:
        c += [S("s_mov_b32", "s96", 0), V("v_mov_b32", vStamp, -1), S("s_mov_b32", "m0", 0)] + stamp()
    c += [V("v_readfirstlane_b32", "s28", "v0"), V("v_and_b32", "v20", 63, "v0"),
          S("s_and_b32", "s100", "s2", 7), S("s_lshr_b32", "s101", "s2", 3), S("s_lshr_b32", "s90", "s100", 2),
          S("s_and_b32", "s91", "s100", 1), S("s_lshl_b32", "s91", "s91", 2), S("s_and_b32", "s3", "s101", 3),
          S("s_add_u32", "s91", "s91", "s3"), S("s_bfe_u32", "s98", "s101", (2 << 16) | 2),
          S("s_and_b32", "s99", "s100", 2), S("s_lshr_b32", "s100", "s101", 4), S("s_add_u32", "s99", "s99", "s100"),
          S("s_lshr_b32", "s28", "s28", 6)]
    if int(CFG["pf"]):
        c += code_prefetch("L_q0", "L_w1", 7, 32, "a239")
    if int(CFG["rot1"]):
        c += [S("s_lshr_b32", "s100", "s101", 2), S("s_add_u32", "s100", "s100", "s3")]
        for _ in range(2):
            c += [S("s_sub_u32", "s101", "s100", 5), S("s_cselect_b32", "s100", "s100", "s101")]
    else:
        c += [S("s_mov_b32", "s100", 0)]
    for m in range(5):
        c += [S("s_add_u32", "s101", "s100", m), S("s_sub_u32", "s29", "s101", 5), S("s_cselect_b32", "s101", "s101", "s29"),
              S("s_lshl_b32", "s%d" % (SM + m), "s101", 7), S("s_add_u32", "s%d" % (SM + 5 + m), "s%d" % (SM + m), 640)]
    if int(CFG["rot2"]):
        c += [S("s_xor_b32", "s62", "s3", "s98"), S("s_lshl_b32", "s62", "s62", int(CFG["rot2"]) - 1)]
    else:
        c += [S("s_mov_b32", "s62", 0)]
    c += [S("s_lshr_b32", "s92", "s28", 1), S("s_and_b32", "s93", "s28", 1),
          S("s_lshl_b32", "s94", "s91", 1), S("s_add_u32", "s94", "s94", "s92"),
          S("s_lshl_b32", "s95", "s99", 3), S("s_add_u32", "s95", "s95", "s98")]
    c += [S("s_mul_i32", "s31", "s28", 3080), S("s_add_u32", "s31", "s31", WRING),
          S("s_lshl_b32", "s38", "s28", 11), S("s_add_u32", "s38", "s38", 8192)]
    c += [V("v_and_b32", "v21", 15, "v20"), V("v_lshrrev_b32", "v22", 4, "v20"),
          V("v_bfe_u32", "v23", "v20", 2, 2), V("v_and_b32", "v24", 3, "v20")]
    c += [V("v_lshrrev_b32", "v25", 3, "v20"), V("v_mul_u32_u24", "v25", 1280, "v25"), V("v_and_b32", "v26", 7, "v20"),
          V("v_lshlrev_b32", "v27", 1, "v22"), V("v_xor_b32", "v26", "v26", "v27"), V("v_lshl_add_u32", vX, "v26", 4, "v25")]
    c += [S("s_mul_i32", "s100", "s28", 8 * 12288), S("s_mul_i32", "s101", "s93", 6144)]
    for p in range(3):
        c += lane_rowchunk(p, "v25", "v26", "v20", "v30")
        c += [V("v_bfe_u32", "v27", "v25", 1, 1), V("v_lshlrev_b32", "v27", 2, "v27"), V("v_xor_b32", "v27", "v27", "v26"),
              V("v_mul_u32_u24", "v28", 12288, "v25"), V("v_lshl_add_u32", "v28", "v27", 4, "v28"),
              V("v_add_u32", "v28", "s100", "v28"), V("v_subrev_u32", vWd[p], p * 1024, "v28")]
        c += [V("v_bfe_u32", "v27", "v25", 1, 2), V("v_lshlrev_b32", "v27", 1, "v27"), V("v_xor_b32", "v27", "v27", "v20"),
              V("v_lshlrev_b32", "v27", 4, "v27"), V("v_add_u32", vKV[p], "s101", "v27")]
    c += [raw("s_waitcnt lgkmcnt(0)")]
    c += [S("s_cmp_eq_u32", "s90", 0)]
    for k in range(5):
        c += [S("s_cselect_b64", "s[%d:%d]" % (64 + 2 * k, 65 + 2 * k), "s[%d:%d]" % (64 + 2 * k, 65 + 2 * k), "s[%d:%d]" % (74 + 2 * k, 75 + 2 * k))]
    c += [S("s_mul_i32", "s100", "s94", 204800), S("s_mul_i32", "s101", "s93", 102400), S("s_add_u32", "s100", "s100", "s101")]
    c += srd(8, "s64", "s65", "s100", 0 if "noX" in CFG["dbg"] else 102400)
    c += [S("s_mul_i32", "s100", "s95", 384), S("s_sub_u32", "s101", 640 * 12288, "s100")]
    c += srd(12, "s70", "s71", "s100", 4 * 384 if "noW" in CFG["dbg"] else "s101")
    return c


def code_prefetch(lab_from, lab_to, per, vt, vd):
    a, b = "v%d" % vt, "v%d" % (vt + 1)
    return [raw("s_getpc_b64 s[40:41]", wr="s[40:41]"),
            S("s_add_u32", "s40", "s40", "%s-." % lab_from), S("s_addc_u32", "s41", "s41", 0),
            S("s_lshr_b32", "s29", "s2", 3), S("s_lshl_b32", "s29", "s29", 2), S("s_add_u32", "s29", "s29", "s28"), S("s_mul_i32", "s29", "s29", per),
            S("s_mov_b32", "s30", "%s-%s" % (lab_to, lab_from)),
            V("v_min_u32", a, per - 1, "v20"), V("v_add_u32", a, "s29", a), V("v_lshlrev_b32", a, 7, a), V("v_min_u32", a, "s30", a),
            V("v_mov_b32", b, "s41"),
            I("v_add_co_u32 %s, vcc, s40, %s" % (a, a), "valu", rd=["s40", a], wr=[a, "vcc"]), nop(2),
            I("v_addc_co_u32 %s, vcc, 0, %s, vcc" % (b, b), "valu", rd=[b], wr=[b, "vcc"]),
            I("global_load_dword %s, v[%d:%d], off" % (vd, vt, vt + 1), "vld", rd=[a, b], wr=vd, tag="pf")]


def setup2():
    c = []
    nkv = 0 if "noKV" in CFG["dbg"] else 196608
    c += [S("s_lshl_b32", "s100", "s94", 5), S("s_add_u32", "s3", "s100", "s95"), S("s_mul_i32", "s100", "s3", 196608)]
    c += srd(16, "s66", "s67", "s100", nkv)
    c += srd(20, "s68", "s69", "s100", nkv)
    c += [S("s_lshl_b32", "s100", "s90", 9), S("s_add_u32", "s100", "s100", "s3"), S("s_mul_i32", "s100", "s100", 61440),
          S("s_mul_i32", "s101", "s93", 5120), S("s_add_u32", "s100", "s100", "s101"), S("s_add_u32", "s100", "s100", WS_O)]
    c += srd(24, "s88", "s89", "s100", 61440 - 5120)
    c += [S("s_mul_i32", "s101", "s98", 61440), S("s_sub_u32", "s100", "s100", "s101")]
    c += srd(44, "s88", "s89", "s100", 0 if "noX" in CFG["dbg"] else 8 * 61440 - 5120)
    c += [S("s_lshl_b32", "s3", "s90", 3), S("s_add_u32", "s3", "s3", "s91"), S("s_lshl_b32", "s100", "s3", 4)]
    c += srd(4, "s86", "s87", "s100", 0)
    c += srd(48, "s88", "s89", WS_F, 0)
    c += [S("s_mul_i32", "s100", "s98", 320), S("s_and_b32", "s29", "s98", 1), S("s_lshl_b32", "s101", "s29", 6),
          S("s_sub_u32", "s100", "s100", "s101"), S("s_sub_u32", "s101", 1536 * 1280, "s100"),
          S("s_mul_i32", "s30", "s99", 1536 * 1280), S("s_add_u32", "s100", "s100", "s30")]
    c += srd(64, "s72", "s73", "s100", 0 if "noW" in CFG["dbg"] else "s101")
    c += [S("s_lshl_b32", "s3", "s3", 2), S("s_add_u32", "s30", "s3", "s98"), S("s_mul_i32", "s100", "s30", 409600),
          S("s_mul_i32", "s101", "s28", 25600), S("s_add_u32", "s100", "s100", "s101"), S("s_add_u32", "s100", "s100", WS_P)]
    c += srd(68, "s88", "s89", "s100", 3 * 102400 + 25600)
    c += [S("s_lshl_b32", "s100", "s94", 1), S("s_add_u32", "s100", "s100", "s93"), S("s_mul_i32", "s100", "s100", 80 * 2560),
          S("s_mul_i32", "s101", "s90", 1280), S("s_add_u32", "s100", "s100", "s101"),
          S("s_mul_i32", "s101", "s98", 320), S("s_add_u32", "s100", "s100", "s101")]
    c += srd(72, "s84", "s85", "s100", 79 * 2560 + 320)
    c += srd(76, "s88", "s89", WS_F, 0)
    if CFG["stamps"]:
        c += [S("s_mov_b32", "s90", "s88"), S("s_mov_b32", "s91", "s89")]
    c += [S("s_mov_b32", "s80", "s99"), S("s_mov_b32", "s81", "s29"),
          S("s_add_u32", "s82", "s3", "s99"), S("s_lshl_b32", "s82", "s82", 7),
          S("s_lshl_b32", "s83", "s30", 7), S("s_add_u32", "s83", "s83", 8192),
          S("s_lshl_b32", "s84", "s98", 2), S("s_add_u32", "s84", "s84", "s82"),
          S("s_lshl_b32", "s85", "s99", 2), S("s_add_u32", "s85", "s85", "s83"),
          S("s_cmp_eq_u32", "s28", 0), S("s_cselect_b32", "s37", 4, 0)]
    c += [V("v_lshlrev_b32", vL16, 4, "v20"), V("v_mov_b32", vOne, 0)]
    c += [S("s_add_u32", "s78", "s84", "s37"), vstore(vOne, vL16, sFs, "s84", 0, "sc1", tag="F", op="buffer_store_dword"),
          S("s_add_u32", "s78", "s85", "s37"), vstore(vOne, vL16, sFs, "s85", 0, "sc1", tag="F", op="buffer_store_dword")]
    c += [S("s_mul_i32", "s33", "s28", 6144), S("s_add_u32", "s34", "s33", VB), S("s_add_u32", "s33", "s33", KB)]
    c += [S("s_mov_b32", "s42", hex(SCALE)), S("s_mov_b32", "s43", hex(SCALE)), S("s_mov_b32", "s30", 0)]
    c += [V("v_lshlrev_b32", "v25", 7, "v21"), V("v_add_u32", "v25", "s38", "v25"),
          V("v_bfe_u32", "v26", "v21", 1, 2), V("v_lshlrev_b32", "v26", 1, "v26"), V("v_xor_b32", "v26", "v26", "v22"),
          V("v_lshl_add_u32", vXr[0], "v26", 4, "v25"), V("v_xor_b32", vXr[1], 64, vXr[0])]
    c += [V("v_mov_b32", vOne, 1)]
    c += [V("v_mul_u32_u24", "v25", 3080, "v22"), V("v_mul_u32_u24", "v26", 384, "v23"), V("v_add_u32", "v25", "v25", "v26"),
          V("v_add_u32", "v25", WRING, "v25"), V("v_lshrrev_b32", "v26", 1, "v23"), V("v_lshlrev_b32", "v26", 2, "v26")]
    for m in range(2):
        c += [V("v_or_b32", "v27", 4 * m, "v24"), V("v_xor_b32", "v27", "v27", "v26"), V("v_lshl_add_u32", vWr[m], "v27", 4, "v25")]
    c += [S("s_mul_i32", "s100", "s92", 12288), S("s_add_u32", "s101", "s100", VB), S("s_add_u32", "s100", "s100", KB)]
    c += [V("v_mul_u32_u24", "v25", 384, "v21"), V("v_add_u32", "v25", "s100", "v25"),
          V("v_bfe_u32", "v26", "v21", 1, 2), V("v_lshlrev_b32", "v26", 1, "v26")]
    c += [V("v_xor_b32", "v27", "v22", "v26"), V("v_lshl_add_u32", vKr[0], "v27", 4, "v25")]
    c += [V("v_lshrrev_b32", "v28", 2, "v20"), V("v_mul_u32_u24", "v25", 384, "v28"), V("v_add_u32", "v25", "s101", "v25"),
          V("v_and_b32", "v27", 1, "v24"), V("v_lshl_add_u32", "v25", "v27", 3, "v25"),
          V("v_bfe_u32", "v26", "v28", 1, 2), V("v_lshlrev_b32", "v26", 1, "v26"), V("v_lshrrev_b32", "v29", 1, "v24")]
    c += [V("v_xor_b32", "v27", "v29", "v26"), V("v_lshl_add_u32", vVr[0], "v27", 4, "v25")]
    return c


def interleave(body, seq, first=0, every=None):
    every = every or max(1, (len(body) - first) // max(1, len(seq)))
    out = []
    seq = list(seq)
    due = first
    for k, i in enumerate(body):
        uses_scc = i.text.startswith(("s_addc", "s_cselect", "s_cbranch"))
        if seq and k >= due and not uses_scc:
            pre, m, post = seq.pop(0)
            out += pre + [m] + post
            due = k + every
        out.append(i)
    for pre, m, post in seq:
        out += pre + [m] + post
    return out


def wslot(i):
    return i % NW1


def w_dma(rnd, i):
    lo = WRING + wslot(i) * WSLOT
    pre = [S("s_add_u32", "m0", "s31", wslot(i) * WSLOT),
           S("s_mul_i32", "s32", "s%d" % (SM + (i >> 1)), 6144) if not i & 1 else S("s_add_u32", "s32", "s32", 32 * 12288)]
    d = [dma(vWd[p], sW, "s32", p * 1024, CFG["w_flags"], tag=("W", rnd, i), lds=(lo, lo + WSLOT, ("W", rnd, i))) for p in range(3)]
    return [(pre, d[0], []), ([], d[1], []), ([], d[2], [])]


def kv_dma(which, rnd, j, slot=None):
    base, sb, so, sr = (KB, "s33", "s35", sK) if which == "K" else (VB, "s34", "s36", sV)
    slot = j % 3 if slot is None else slot
    lo = base + slot * SLOT2
    tag = (which, rnd, j)
    out = []
    for u in range(2):
        for p in range(3):
            pre = [S("s_add_u32", "m0", sb, slot * SLOT2 + u * 3072)] if p == 0 else []
            post = [S("s_add_u32", so, so, 3072 if u == 0 else 12288 - 3072)] if p == 2 else []
            out.append((pre, dma(vKV[p], sr, so, p * 1024, CFG["kv_flags"], tag=tag, lds=(lo, lo + SLOT2, tag)), post))
    return out


NXB = 8


def xquad(rnd, i, qt):
    b = i % NXB
    t = b if rnd == 0 else (2 * b + 1 if b < 6 else 2 * (b - 6))
    return (t * 5 + qt) * 4


def xreg(rnd, i, qt):
    return R("a", xquad(rnd, i, qt), 4)


def x_dma(rnd, m, qt, sig):
    tag = ("X", rnd, m, qt)
    out = []
    for u in range(2):
        pre = [S("s_add_u32", "m0", "s38", (sig - 1) * 8192)] if u == 0 else []
        pre += [S("s_add_u32", "s39", "s%d" % (SM + m), qt * 20480 + u * (10240 - 1024))]
        out.append((pre, dma(vX, sX, "s39", u * 1024, CFG["x_flags"], tag=tag, lds=(sig * 8192, sig * 8192 + 8192, tag)), []))
    return out


def x_read(rnd, m, qt, e, sig):
    return dsread("ds_read_b128", xreg(rnd, 2 * m + e, qt), vXr[e], (sig - 1) * 8192, tag=("Xf", rnd, 2 * m + e, qt),
                  lds=(sig * 8192, sig * 8192 + 8192, ("X", rnd, m, qt)))


def q_pre(rnd):
    seq = w_dma(rnd, 0)
    for qt in range(5):
        seq += x_dma(rnd, 0, qt, 1 + qt)
    seq += w_dma(rnd, 1)
    for qt in range(3):
        seq += x_dma(rnd, 1, qt, 6 + qt)
    seq += w_dma(rnd, 2) + w_dma(rnd, 3)
    return seq[:int(CFG["npre0"])] if rnd == 0 else seq


def w_reads(rnd, i, n):
    p, T = n >> 1, n & 1
    lo = WRING + wslot(i) * WSLOT
    return [dsread("ds_read_b64_tr_b16", R("a", frag(n) + 2 * half, 2), vWr[p & 1],
                   wslot(i) * WSLOT + (p >> 1) * 128 + T * 8 + half * 1536, tag=("Wf", rnd, i, n),
                   lds=(lo, lo + WSLOT, ("W", rnd, i))) for half in range(2)]


def place_seq(G, g0, step, seq):
    g = g0
    for pre, m, post in seq:
        place_vm(G, g, pre, m, post)
        g += step


def place_vm(G, g, pre, m, post):
    gg = G.put_m(g, m)
    assert gg == g, "gap %d busy" % g
    for k, p in enumerate(pre):
        G.put_s(min(g - 3 + k, g - 1) if g >= 3 else 0, p)
    for p in post:
        G.put_s(g + 1, p)


def o_store(rnd, n, src):
    p, qt = n // 5, n % 5
    return ([S("s_mov_b32", "s88", p * 10240 + qt * 1024)], vstore(src, vL16, sO, "s88", 0, CFG["ost_flags"], tag=("O", rnd)), [])


def parked(n):
    return R("a", (2 * (n // 5) * 5 + n % 5) * 4, 4)


def q_cvt(n):
    s = QACC + 8 * n
    return [V("v_cvt_pk_bf16_f32", "v%d" % (QB + 4 * n + k), "v%d" % (s + 2 * k), "v%d" % (s + 2 * k + 1)) for k in range(4)]


def q_head(rnd):
    return [S("s_mov_b32", "s35", 0), S("s_mov_b32", "s36", 0), V("v_xor_b32", vXr[1], 64, vXr[0]),
            waitv(("W", rnd, 0), ("X", rnd, 0, 4)), barrier()] + \
        sum([w_reads(rnd, 0, n) for n in range(3)], []) + [x_read(rnd, 0, qt, 0, 1 + qt) for qt in range(5)]


def q_phase(rnd):
    mf = []
    for i in range(20):
        for n in range(12):
            p, T = n >> 1, n & 1
            for qt in qorder(n):
                d = R("v", QACC + (p * 5 + qt) * 8 + 4 * T, 4)
                mf.append(mfma(d, R("a", frag(n), 4), xreg(rnd, i, qt), "0" if i == 0 else d))
    G = Gaps(mf)
    for f in range(240):
        ff = f + 3
        if ff < 240:
            rd = w_reads(rnd, ff // 12, ff % 12)
            G.put_m(5 * f, rd[0])
            G.put_m(5 * f + 1, rd[1])
        else:
            G.put_m(5 * f, k_read(rnd, 0, ff - 240))
        if f < 239:
            tags = [("Wf", rnd, (f + 1) // 12, (f + 1) % 12)]
            if f % 12 == 11:
                tags += [("Xf", rnd, (f + 1) // 12, qt) for qt in range(5)]
        else:
            tags = [("Kf", rnd, 0, 0)]
        G.put_s(5 * f + 4, waitl(*tags))
    for i in range(20):
        G.put_s(60 * i + 44, waitv(("W", rnd, i + 1) if i < 19 else ("K", rnd, 0), ("O", 0) if (rnd and i == 19) else None), barrier())
    k0at, v0at, delay = int(CFG["k0at"]), int(CFG["v0at"]), int(CFG["xdelay"])
    npre = len(q_pre(rnd))
    dvfree = [True] * 240
    sfree = {sig: 0 for sig in range(1, 9)}
    qfree = {}
    nd = int(CFG["nd0"])
    if rnd:
        for n in range(nd, 30):
            qfree[(2 * (n // 5) * 5 + n % 5) * 4] = INF
    last_rd = 0

    def reads(m, qt, sig, gmin, es=(0, 1)):
        nonlocal last_rd
        first = True
        for e in es:
            i = 2 * m + e
            g = max(gmin, last_rd, 60 * (i - NXB + 1), qfree.get(xquad(rnd, i, qt), 0))
            assert g < INF
            n = (g + 2) // 5
            while not dvfree[n]:
                n += 1
            dvfree[n] = False
            g = 5 * n + 2
            assert g < 60 * i - 5, "x fragment (%d,%d,%d) late: gap %d" % (m, qt, e, g)
            if first:
                G.put_s(g, waitv(("X", rnd, m, qt)))
                first = False
            assert G.put_m(g, x_read(rnd, m, qt, e, sig)) == g
            last_rd = g
        sfree[sig] = last_rd + 16
    for qt in range(5):
        reads(0, qt, 1 + qt, 0, es=(1,))
    nx1 = max(0, min(3, (npre - 16) // 2))
    for qt in range(nx1):
        reads(1, qt, 6 + qt, 30)
    pieces = [(1, qt) for qt in range(nx1, 5)] + [(m, qt) for m in range(2, 10) for qt in range(5)]
    wq = [i for i in range(2, 20) if not (i < 4 and npre >= 22 + 3 * (i - 1))]
    soft = []
    kvq = [("V", 0, 0), ("V", 0, 1), ("K", 0, 0), ("K", 0, 1), ("K", 1, 0), ("K", 1, 1), ("K", 2, 0), ("K", 2, 1), ("V", 1, 0), ("V", 1, 1)]
    stq = list(range(nd, 30)) if rnd else []
    used = ["."] * 240

    def after_bar(g):
        return 12 * ((g - 44 + 59) // 60) + 9

    def kv_release(wh, j):
        if (wh, j) == ("V", 0):
            return 12 * v0at
        if (wh, j) == ("K", 0):
            return 12 * k0at
        if (wh, j) == ("V", 1):
            return 12 * 17 + 9
        if pieces:
            return INF
        return after_bar(max(sfree[sg] for sg in ((3, 4, 5) if j == 1 else (6, 7, 8))))
    n = 0
    while n < 240:
        cand = []
        if wq and n >= (12 * (wq[0] - 4) + 9 if wq[0] >= NW1 else 0):
            cand.append((60 * (wq[0] - 1) + 44 - 150, "W"))
        if pieces:
            m, qt = pieces[0]
            sg = [x for x in range(1, 9) if sfree[x] <= 5 * n and not (x <= 2 and 5 * n + delay + 50 > 60 * (k0at - 1) + 44)]
            blocked = any(qfree.get(xquad(rnd, 2 * m + e, qt), 0) >= INF for e in range(2))
            if sg and not blocked:
                cand.append((120 * m - 40 - 10 * (4 - qt) - delay, "x"))
        if kvq and n >= kv_release(*kvq[0][:2]):
            cand.append((5 * kv_release(*kvq[0][:2]) + 30, "k"))
        if stq and n >= (stq[0] - nd) * int(CFG["stsp"]):
            cand.append((5 * (stq[0] - nd) * int(CFG["stsp"]) + 30, "s"))
        if not cand:
            n += 1
            continue
        kind = min(cand)[1]
        if kind == "W":
            seq = w_dma(rnd, wq.pop(0))
        elif kind == "x":
            m, qt = pieces.pop(0)
            sig = min(sg, key=lambda x: (sfree[x], x))
            seq = x_dma(rnd, m, qt, sig)
            dl = min(delay, 120 * m - 30 - 10 * (4 - qt) - (5 * n + 8))
            reads(m, qt, sig, 5 * n + 8 + dl)
            if CFG.get("verbose"):
                print("x piece", m, qt, "slot", sig, "dma gap", 5 * n + 3, "delay", dl, "read done", last_rd)
        elif kind == "k":
            wh, j, u = kvq.pop(0)
            seq = kv_dma(wh, rnd, j)[3 * u:3 * u + 3]
        else:
            f = stq.pop(0)
            seq = [o_store(0, f, parked(f))]
            qfree[(2 * (f // 5) * 5 + f % 5) * 4] = 5 * n + 8
        for pre, mm, post in seq:
            place_vm(G, 5 * n + 3, pre, mm, post)
            used[n] = kind
            n += 1
    assert not (wq or pieces or kvq or stq)
    if rnd:
        assert used[238] == "."
        place_vm(G, 5 * 238 + 3, [S("s_mov_b32", "s6", "s37")],
                 I("buffer_atomic_add %s, %s, %s, 0 offen" % (vOne, vL16, sC), "vst", rd=[vOne, vL16, sC], tag="C"), [])
        G.put_s(1150, S("s_add_u32", "s24", "s24", 4 * 61440))
        G.put_s(1150, S("s_addc_u32", "s25", "s25", 0))
    if CFG.get("verbose"):
        print("vm slots:", " ".join("".join(used[12 * i:12 * i + 12]) for i in range(20)))
    assert last_rd < 1140
    G.put_v(1141, V("v_xor_b32", vKr[1], 64, vKr[0]))
    g = 0
    over = []
    for nn in range(int(CFG["nq"])):
        for c in q_cvt(nn):
            g = max(g, 1140 + 10 * (nn // 5) + 13)
            while g < 1200 and G.cost(g) + max(0, len(G.s[g]) - 1) > 1:
                g += 1
            if g < 1200:
                G.v[g].append(c)
            else:
                over.append(c)
    if CFG.get("verbose"):
        print("exposed cvt:", len(over))
    return [waitall(False, True)] + stamp() + G.flat() + over


def k_read(rnd, j, n, real=True, slot=None):
    kt, ds = n // 6, n % 6
    slot = j % 3 if slot is None else slot
    lo = KB + slot * SLOT2
    return dsread("ds_read_b128", R("a", frag(n), 4), vKr[ds & 1], slot * SLOT2 + kt * 6144 + (ds >> 1) * 128, tag=("Kf", rnd, j, n),
                  lds=(lo, lo + SLOT2, ("K", rnd, j) if real else None))


def v_reads(rnd, j, t, slot=None):
    slot = j % 3 if slot is None else slot
    lo = VB + slot * SLOT2
    return [dsread("ds_read_b64_tr_b16", R("a", frag(t) + 2 * half, 2), vVr[t & 3], slot * SLOT2 + half * 6144 + (t >> 2) * 128,
                   tag=("Vf", rnd, j, t), lds=(lo, lo + SLOT2, ("V", rnd, j))) for half in range(2)]


def zbuf(k):
    return ZB + 20 * (k % 3)


def softmax_ops(n):
    t0, t1 = zbuf(n + 1), zbuf(n)
    ops = []
    for T in range(2):
        for qt in range(5):
            pk = CFG["pk"]
            for k in range(4):
                r = "v%d" % ((t0, t1)[T] + 4 * qt + k)
                r2 = R("v", (t0, t1)[T] + 4 * qt + (k & 2), 2)
                l = "v%d" % (LB + 2 * qt + (k & 1))
                if "M" not in pk:
                    ops.append(("m", T, qt, k, V("v_mul_f32", r, "s42", r)))
                elif not k & 1:
                    ops.append(("M", T, qt, k >> 1, V("v_pk_mul_f32", r2, r2, "s[42:43]")))
                ops.append(("e", T, qt, k, V("v_exp_f32", r, r)))
                if "A" not in pk:
                    ops.append(("a", T, qt, k, V("v_add_f32", l, l, r)))
                elif k & 1:
                    ops.append(("A", T, qt, k >> 1, V("v_pk_add_f32", R("v", LB + 2 * qt, 2), R("v", LB + 2 * qt, 2), r2)))
            if T:
                a, b = t0 + 4 * qt, t1 + 4 * qt
                for k, (d, s) in enumerate(((b + 3, b + 2), (b + 2, b), (b, a), (b + 1, a + 2))):
                    ops.append(("c", 1, qt, k, V("v_cvt_pk_bf16_f32", "v%d" % d, "v%d" % s, "v%d" % (s + 1))))
    return ops


_sm_plan = None


def softmax_plan():
    global _sm_plan
    if not _sm_plan:
        cost = [0] * 120
        for n in range(24):
            cost[5 * n] += 1
            if (n + 3) % 24 >= 12:
                cost[5 * n + 1] += 1
        for n in range(6):
            cost[5 * n + 3] += 1
            cost[5 * (n + 9) + 3] += 1
        for g in (44, 104, 119):
            cost[g] += 1
        pk = CFG["pk"]
        if pk == "0":
            _sm_plan = make_plan(cost, first=(31, 61))
        else:
            _sm_plan = make_plan_pk(cost, perk=int(pk[0]), pkmul="M" in pk, pkadd="A" in pk)
    return _sm_plan


def softmax_sched(n, lo, hi):
    plan = softmax_plan()
    return sorted([(plan[o[:4]], k + (1000 if o[0] in "MA" else 0), o[4]) for k, o in enumerate(softmax_ops(n)) if lo <= plan[o[:4]] < hi],
                  key=lambda x: x[:2])


def qk_mfmas(j):
    mf = []
    for n in range(12):
        kt, ds = n // 6, n % 6
        for qt in range(5):
            d = R("v", (zbuf(j + 1) if kt == 0 else zbuf(j)) + 4 * qt, 4)
            mf.append(mfma(d, R("a", frag(n), 4), R("v", QB + (ds * 5 + qt) * 4, 4), "0" if ds == 0 else d))
    return mf


def pv_mfmas(j, zero):
    mf = []
    for t in range(12):
        for qt in qorder(t):
            d = R("a", (t * 5 + qt) * 4, 4)
            mf.append(mfma(d, R("a", frag(t), 4), R("v", zbuf(j) + 4 * qt, 4), "0" if zero else d))
    return mf


def a_step(rnd, j):
    haspv = j >= 0
    G = Gaps(qk_mfmas(j + 1) + (pv_mfmas(j, j == 0) if haspv else [None] * 60))
    for n in range(24):
        nn = n + 3
        if nn < 12:
            G.put_m(5 * n, k_read(rnd, j + 1, nn))
        elif nn < 24:
            if haspv:
                rd = v_reads(rnd, j, nn - 12)
                G.put_m(5 * n, rd[0])
                G.put_m(5 * n + 1, rd[1])
        else:
            G.put_m(5 * n, k_read(rnd, j + 2, nn - 24, real=(j + 2 < 16)))
        nx = n + 1
        tag = ("Kf", rnd, j + 1, nx) if nx < 12 else ("Vf", rnd, j, nx - 12) if nx < 24 else ("Kf", rnd, j + 2, 0)
        G.put_s(5 * n + 4, waitl(tag))
    if haspv:
        G.put_s(44, waitv(("V", rnd, j)), barrier())
        if j > 0:
            place_seq(G, 3, 5, kv_dma("K", rnd, j + 3))
            place_seq(G, 48, 5, kv_dma("V", rnd, j + 2))
        G.put_s(104, waitv(("K", rnd, j + 2)), barrier())
        for g, _, o in softmax_sched(j, 120, 200):
            G.v[g - 120].append(o)
    else:
        G.put_s(24, barrier())
        place_seq(G, 28, 5, kv_dma("V", rnd, 2))
        G.put_s(59, waitv(("K", rnd, 1)), barrier())
        place_seq(G, 63, 10, kv_dma("K", rnd, 3))
        g = 0
        for nn in range(int(CFG["nq"]), 30):
            for c in q_cvt(nn):
                g = G.put_v(max(g, 3 if nn >= 25 else 0), c, limit=(17 if nn < 25 else 22) + nn % 5)
        for c in [V("v_mov_b32", "v%d" % (LB + qt), 0) for qt in range(10)] + [V("v_xor_b32", vVr[m], 32 * m, vVr[0]) for m in range(1, 4)]:
            g = G.put_v(g, c, limit=31)
        G.put_s(1, S("s_mov_b32", "s40", hex(f32bits(2.0 ** int(CFG["lolim"])))))
        G.put_s(2, S("s_mov_b32", "s41", hex(f32bits(2.0 ** int(CFG["hilim"])))))
    for g, _, o in softmax_sched(j + 1, 0, 120):
        G.v[g].append(o)
    ins = G.flat()
    if j == 0:
        ins += [S("s_mov_b32", "s29", 5)]
    if j > 0 and j % 3 == 2:
        if "ast" in CFG["dbg"]:
            ins += stamp()
        ins += [S("s_sub_u32", "s29", "s29", 1), S("s_cmp_eq_u32", "s29", 0), branch("s_cbranch_scc1 L_t")]
    if j > 0 and j % 3 == 0:
        ins += [branch("s_branch L_s1")]
    return ins


def a_tail_head(rnd):
    L = ["v%d" % (LB + 2 * k) for k in range(5)]
    a, b, t = "v%d" % TMP, "v%d" % (TMP + 1), "v%d" % (TMP + 2)
    c = [V("v_add_f32", L[k], L[k], "v%d" % (LB + 2 * k + 1)) for k in range(5)]
    for op in ("v_permlane32_swap_b32", "v_permlane16_swap_b32"):
        for stage in range(3):
            for qt in range(5):
                l, u = L[qt], "v%d" % (210 + qt)
                c += [V("v_mov_b32", u, l) if stage == 0 else V(op, u, l) if stage == 1 else V("v_add_f32", l, l, u)]
    c += [V("v_rcp_f32", "v%d" % (RCP + 2 * qt), L[qt]) for qt in range(5)]
    c += [V("v_max3_f32", a, L[0], L[1], L[2]), V("v_min3_f32", b, L[0], L[1], L[2]),
         V("v_max3_f32", a, a, L[3], L[4]), V("v_min3_f32", b, b, L[3], L[4]),
         V("v_cmp_lt_f32", "vcc", "s41", a), V("v_cmp_gt_f32", "s[100:101]", "s40", b),
         S("s_lshl_b32", "s3", "s28", 2), S("s_add_u32", "s3", "s3", LFLAG), V("v_mov_b32", b, "s3"),
         S("s_or_b64", "vcc", "vcc", "s[100:101]"), S("s_cselect_b32", "s3", 1, 0), V("v_mov_b32", a, "s3"),
         dswrite("ds_write_b32", b, a, 0, tag="lf"), V("v_mov_b32", t, LFLAG),
         S("s_cmp_eq_u32", "s30", 0), branch("s_cbranch_scc0 L_t1")]
    return c


def o_addr_setup():
    l, g, r, cc = "v%d" % (TMP + 8), "v%d" % (TMP + 9), "v%d" % (TMP + 10), "v%d" % (TMP + 11)
    a, b, d, e, t = ["v%d" % (TMP + 12 + k) for k in range(5)]
    c = [V("v_lshrrev_b32", l, 4, vL16), V("v_lshrrev_b32", g, 4, l), V("v_bfe_u32", r, l, 2, 2), V("v_and_b32", cc, 3, l),
         S("s_mul_i32", "s100", "s28", 4 * 1280), S("s_mul_i32", "s31", "s28", 3080)]
    for p in range(3):
        c += lane_rowchunk(p, a, b, l, t)
        c += [V("v_bfe_u32", d, a, 1, 1), V("v_lshlrev_b32", d, 2, d), V("v_xor_b32", d, d, b),
              V("v_lshrrev_b32", e, 2, a), V("v_mul_u32_u24", e, 12, e), V("v_add_u32", e, e, a),
              V("v_mul_u32_u24", e, 1280, e), V("v_lshl_add_u32", e, d, 4, e),
              V("v_add_u32", e, "s100", e), V("v_subrev_u32", vWd[p], p * 1024, e)]
    c += [V("v_mul_u32_u24", a, 3080, g), V("v_mul_u32_u24", b, 384, r), V("v_add_u32", a, a, b),
          V("v_lshrrev_b32", b, 1, r), V("v_lshlrev_b32", b, 2, b)]
    for m in range(2):
        c += [S("s_add_u32", "s100", "s81", m), S("s_and_b32", "s101", "s100", 1), S("s_lshl_b32", "s101", "s101", 2),
              S("s_lshr_b32", "s100", "s100", 1), S("s_lshl_b32", "s100", "s100", 7),
              V("v_or_b32", d, "s101", cc), V("v_xor_b32", d, d, b), V("v_lshl_add_u32", d, d, 4, a),
              V("v_add_u32", vWr[m], "s100", d)]
    c += [V("v_and_b32", a, 15, l), V("v_mul_u32_u24", a, 2560, a), V("v_lshl_add_u32", vX, g, 4, a)]
    return c


def a_tail(rnd):
    j = 15
    f4, t = R("v", TMP + 4, 4), "v%d" % (TMP + 2)
    head = []
    if rnd == 1:
        head += [S("s_mov_b32", "s6", 4), vload("v%d" % (TMP + 3), vL16, sC, "0", 0, "sc1", tag="Cp", op="buffer_load_dword")]
        head += o_addr_setup()
    head += [waitall(False, True), waitv(("V", rnd, 15), ("V", rnd, 16)), barrier(),
             dsread("ds_read_b128", f4, t, 0, tag="lfr")]
    head += sum([v_reads(rnd, j, k) for k in range(3)], []) + [waitl(("Vf", rnd, j, 0))]
    head += [V("v_or3_b32", t, "v%d" % (TMP + 4), "v%d" % (TMP + 5), "v%d" % (TMP + 6)), V("v_or_b32", t, t, "v%d" % (TMP + 7))]
    G = Gaps(pv_mfmas(j, False))
    for n in range(12):
        if n + 3 < 12:
            rd = v_reads(rnd, j, n + 3)
            G.put_m(5 * n, rd[0])
            G.put_m(5 * n + 1, rd[1])
        if n < 11:
            G.put_s(5 * n + 4, waitl(("Vf", rnd, j, n + 1)))
    G.v[0].append(V("v_readfirstlane_b32", "s3", t))
    G.put_s(3, S("s_cmp_lg_u32", "s3", 0), branch("s_cbranch_scc1 L_slow"))
    if rnd == 0:
        G.put_s(4, S("s_add_u32", "s12", "s12", 4 * 384), S("s_addc_u32", "s13", "s13", 0), S("s_sub_u32", "s14", "s14", 4 * 384))
        seq = q_pre(1)
    else:
        seq = o_pre_w()
    place_seq(G, 8, 5, seq[:11])
    g = 14
    for n in range(NSH):
        for c in o_pack(n, False):
            g = G.put_v(g, c)
    return head + G.flat(), seq[11:]


NSH = 3


def o_pack(n, packed_mul):
    p, qt = n // 5, n % 5
    t = 160 + 8 * (n % 4)
    c = [V("v_accvgpr_read_b32", "v%d" % (t + 4 * T + k), "a%d" % (((2 * p + T) * 5 + qt) * 4 + k)) for T in range(2) for k in range(4)]
    if packed_mul:
        c += [V("v_pk_mul_f32", R("v", t + 2 * k, 2), R("v", t + 2 * k, 2), R("v", RCP + 2 * qt, 2), mods="op_sel_hi:[1,0]") for k in range(4)]
    else:
        c += [V("v_mul_f32", "v%d" % (t + k), "v%d" % (t + k), "v%d" % (RCP + 2 * qt)) for k in range(8)]
    c += [V("v_cvt_pk_bf16_f32", "v%d" % (16 + 4 * n + k), "v%d" % (t + 2 * k), "v%d" % (t + 2 * k + 1)) for k in range(4)]
    return c


def a_epilogue(rnd, extra, head):
    nd = int(CFG["nd%d" % rnd])
    assert nd >= NSH
    c = []
    at = {NSH + (k * (30 - NSH)) // nd: k for k in range(nd)}
    for n in range(NSH, 30):
        w = o_pack(n, True)
        c += w[:8]
        for pre, d, post in extra.get(n, []):
            c += pre + [d] + post
        if n == 28:
            c += head
        c += w[8:]
        if n >= nd:
            q = (2 * (n // 5) * 5 + n % 5) * 4
            c += [V("v_accvgpr_write_b32", "a%d" % (q + k), "v%d" % (16 + 4 * n + k)) for k in range(4)]
        if n in at:
            assert at[n] <= n
            pre, d, post = o_store(rnd, at[n], R("v", 16 + 4 * at[n], 4))
            c += pre + [d] + post
    return c


def spin(label, back, load, test):
    return [S("s_mov_b32", "s87", "0x40000")], \
        [raw("s_sleep 4"), load, waitall(True, False)] + test + [branch("s_cbranch_scc1 %s" % back),
         S("s_sub_u32", "s87", "s87", 1), S("s_cmp_lg_u32", "s87", 0), branch("s_cbranch_scc1 %s_l" % label), branch("s_branch %s" % back)]


def slow_blocks(P):
    M = ["v%d" % (MB + k) for k in range(5)]

    def load(which, j):
        c = []
        for pre, d, post in kv_dma(which, "s", j, slot=0):
            c += pre + [d] + post
        return c

    def qk(j):
        c = []
        mf = qk_mfmas(0)
        for n in range(12):
            c += [k_read("s", j, n, slot=0), waitall(False, True)] + mf[5 * n:5 * n + 5]
        return c
    P.block("L_slow", [waitall(), barrier(), S("s_mov_b32", "s35", 0), S("s_mov_b32", "s29", 16)] +
            [V("v_mov_b32", m, "0xff800000") for m in M], align=6)
    for j in range(2):
        c = load("K", j) + [waitall(), barrier()] + qk(j) + [barrier()]
        for qt in range(5):
            for z in (zbuf(1), zbuf(0)):
                r = z + 4 * qt
                c += [V("v_max3_f32", M[qt], M[qt], "v%d" % r, "v%d" % (r + 1)), V("v_max3_f32", M[qt], M[qt], "v%d" % (r + 2), "v%d" % (r + 3))]
        c += [S("s_sub_u32", "s29", "s29", 1), S("s_cmp_lg_u32", "s29", 0), branch("s_cbranch_scc1 L_slow1")]
        P.block("L_slow1", c)
    c = []
    for op in ("v_permlane32_swap_b32", "v_permlane16_swap_b32"):
        for qt in range(5):
            u = "v%d" % (210 + qt)
            c += [V("v_mov_b32", u, M[qt]), V(op, u, M[qt]), V("v_max_f32", M[qt], M[qt], u)]
    c += [V("v_mov_b32", "v%d" % (LB + qt), 0) for qt in range(10)]
    c += [V("v_accvgpr_write_b32", "a%d" % k, 0) for k in range(240)]
    c += [S("s_mov_b32", "s35", 0), S("s_mov_b32", "s36", 0), S("s_mov_b32", "s29", 16),
          S("s_mov_b32", "s40", 0), S("s_mov_b32", "s41", "0x7f800000")]
    P.block("L_slow2", c)
    for j in range(10, 12):
        c = load("K", j) + load("V", j) + [waitall(), barrier()] + qk(j)
        for qt in range(5):
            for z in (zbuf(1), zbuf(0)):
                c += [V("v_sub_f32", "v%d" % (z + 4 * qt + k), "v%d" % (z + 4 * qt + k), M[qt]) for k in range(4)]
        c += [o[4] for o in softmax_ops(0)]
        c += [S("s_sub_u32", "s29", "s29", 1), S("s_cmp_eq_u32", "s29", 0), branch("s_cbranch_scc1 L_tr")]
        mf = pv_mfmas(0, False)
        for t in range(12):
            c += v_reads("s", j, t, slot=0) + [waitall(False, True)] + mf[5 * t:5 * t + 5]
        c += [barrier(), branch("s_branch L_slow3")]
        P.block("L_slow3", c)


def wo_dma(i, dyn):
    lo = (i % NW2) * WSLOT
    pre = [S("s_add_u32", "m0", "s31", lo)]
    if not dyn:
        pre += [S("s_xor_b32", "s3", "s62", i), S("s_mul_i32", "s32", "s3", 32 * 1280)]
    d = [dma(vWd[p], sWo, "s32", p * 1024, CFG["wo_flags"], tag=("Wo", i), lds=(lo, lo + WSLOT, ("Wo", i))) for p in range(3)]
    return [(pre, d[0], []), ([], d[1], []), ([], d[2], [])]


def obuf(i, qt):
    return R("a", ((2 * (i % NW2) + 1) * 5 + qt) * 4, 4)


def o_head():
    return [S("s_mov_b32", "s29", 5), S("s_mov_b32", "s63", NW2 - 2), S("s_add_u32", "s78", "s84", "s37"), S("s_add_u32", "s50", "s82", 16),
            waitv(("Wo", 0)), barrier()] + sum([wo_reads(0, n) for n in range(3)], [])


def o_pre_w():
    return sum([wo_dma(i, False) for i in range(NW2 - 1)], [])


def o_loads(i, dyn):
    out = [([], vload(obuf(i, qt), vL16, sOL, "s35" if qt < 4 else "s36", qt * 1024 if qt < 4 else 0,
                      CFG["old_flags"], tag=("OL", i)), []) for qt in range(5)]
    if not dyn:
        out[0] = ([S("s_xor_b32", "s3", "s62", i), S("s_mul_i32", "s35", "s3", 10240), S("s_add_u32", "s36", "s35", 4096)], out[0][1], [])
    return out


def wo_reads(i, n, real=True):
    p, T = n >> 1, n & 1
    lo = (i % NW2) * WSLOT
    return [dsread("ds_read_b64_tr_b16", R("a", frag(10 * i + n) + 2 * half, 2), vWr[p & 1], lo + (p >> 1) * 128 + T * 8 + half * 1536,
                   tag=("Wof", i, n), lds=(lo, lo + WSLOT, ("Wo", i) if real else None)) for half in range(2)]


PF = 216


def flag_test(need):
    a = "v%d" % PF
    return [V("v_and_b32", a, a, "v%d" % (PF + 1)), V("v_and_b32", "v%d" % (PF + 2), "v%d" % (PF + 2), "v%d" % (PF + 3)),
            V("v_and_b32", a, a, "v%d" % (PF + 2)), V("v_readfirstlane_b32", "s3", a), S("s_cmp_ge_u32", "s3", need)]


def flag_load(so, tag):
    return vload(R("v", PF, 4), vL16, sFp, so, 0, "sc1", tag=tag)


def o_step(i):
    osig, opoll, nd = int(CFG["osig"]), int(CFG["opoll"]), int(CFG["nd1"])
    mf = []
    for n in range(10):
        p, T = n >> 1, n & 1
        for qt in qorder(n):
            d = R("v", OACC + (qt * 5 + p) * 8 + 4 * T, 4)
            mf.append(mfma(d, R("a", frag(10 * i + n), 4), obuf(i, qt), "0" if i == 0 else d))
    G = Gaps(mf)
    for n in range(10):
        nn = n + 3
        rd = wo_reads(i, nn) if nn < 10 else wo_reads(i + 1, nn - 10, real=(i + 1 < 48))
        G.put_m(5 * n, rd[0])
        G.put_m(5 * n + 1, rd[1])
        G.put_s(5 * n + 4, waitl(("Wof", i, n + 1) if n < 9 else ("Wof", i + 1, 0)))
    G.put_s(34, waitv(("Wo", i + 1), ("OL", i + 1), ("O", 1) if i == osig else None), barrier())
    place_seq(G, 38, 5, wo_dma(i + NW2 - 1, True))
    place_seq(G, 8, 5, o_loads(i + NW2 - 1, True))
    adv = [S("s_add_u32", "s63", "s63", 1), S("s_xor_b32", "s3", "s63", "s62"), S("s_mul_i32", "s32", "s3", 32 * 1280),
           S("s_mul_i32", "s35", "s3", 10240), S("s_add_u32", "s36", "s35", 4096)]
    for k, a in enumerate(adv):
        G.put_s((0, 1, 2, 3, 5)[k], a)
    for k, g in enumerate((3, 33)):
        f = nd + 2 * i + k
        if f < 30:
            assert i < osig
            pre, st, post = o_store(1, f, parked(f))
            G.put_m(g, st)
            if k:
                G.put_s(31, *pre)
            else:
                G.pre += pre
    if i == osig + 1:
        G.put_m(3, vstore(vOne, vL16, sFs, "s84", 0, "sc1", tag="F", op="buffer_store_dword"))
    if i == opoll:
        G.put_m(33, flag_load("s82", "F2"))
    tail = []
    if i == 18:
        t = flag_test(1)
        G.put_s(41, waitv("F2"))
        for k in range(4):
            G.put_v(41 + k, t[k])
        tail = [t[4], branch("s_cbranch_scc0 L_w2")]
    ins = G.flat() + tail
    if i == 0:
        ins = [waitv(("OL", 0)), waitl(("Wof", 0, 0))] + ins
    if "ost" in CFG["dbg"] and i % 6 == 5:
        ins += stamp()
    if i > 18 and i % 6 == 5:
        ins += [S("s_sub_u32", "s29", "s29", 1), S("s_cmp_eq_u32", "s29", 0), branch("s_cbranch_scc1 L_e")]
    if i > 18 and i % 6 == 0:
        ins += [branch("s_branch L_k1")]
    return ins


def final_variant(P, v):
    c = [waitall(), nop(4)]
    for n in range(25):
        if n % 4 == v:
            continue
        s = OACC + 8 * n
        c += [S("s_mov_b32", "s100", v * 102400 + n * 1024)]
        c += [V("v_cvt_pk_bf16_f32", "v%d" % (s + k), "v%d" % (s + 2 * k), "v%d" % (s + 2 * k + 1)) for k in range(4)]
        c += [vstore(R("v", s, 4), vL16, sP, "s100", 0, CFG["pst_flags"], tag="P")]
    c += [S("s_add_u32", "s78", "s85", "s37"), S("s_add_u32", "s50", "s83", 16), S("s_mov_b32", "s87", "0x40000"), waitall(), barrier()]
    c += stamp()
    c += [vstore(vOne, vL16, sFs, "s85", 0, "sc1", tag="F", op="buffer_store_dword")]
    P.block("L_e%d" % v, c, align=6)
    c = [flag_load("s83", "F3"), waitall()] + flag_test(1) + [branch("s_cbranch_scc1 L_f%d" % v), raw("s_sleep 2"),
         S("s_sub_u32", "s87", "s87", 1), S("s_cmp_lg_u32", "s87", 0), branch("s_cbranch_scc1 L_p%d" % v)]
    P.block("L_p%d" % v, c)
    c = stamp()
    keep = [n for n in range(25) if n % 4 == v]
    spare = [OACC + 8 * n + 4 * h for n in range(25) if n % 4 != v for h in range(2)]
    buf = {}
    for n in keep:
        for o in range(4):
            if o != v:
                buf[(n, o)] = spare.pop(0)
                c += [S("s_mov_b32", "s100", o * 102400 + n * 1024),
                      vload(R("v", buf[(n, o)], 4), vL16, sP, "s100", 0, CFG["pld_flags"], tag=("PL", v, n))]
    c += [S("s_mov_b32", "s101", "0xffff0000")]
    for n in keep:
        s = OACC + 8 * n
        c += [waitv(("PL", v, n))]
        for o in range(4):
            if o != v:
                b = buf[(n, o)]
                c += [V("v_lshlrev_b32", "v%d" % (PF + k), 16, "v%d" % (b + k)) for k in range(4)]
                c += [V("v_and_b32", "v%d" % (b + k), "s101", "v%d" % (b + k)) for k in range(4)]
                c += [V("v_add_f32", "v%d" % (s + 2 * k), "v%d" % (s + 2 * k), "v%d" % (PF + k)) for k in range(4)]
                c += [V("v_add_f32", "v%d" % (s + 2 * k + 1), "v%d" % (s + 2 * k + 1), "v%d" % (b + k)) for k in range(4)]
        c += [S("s_mov_b32", "s100", (n // 5) * 16 * 2560 + (n % 5) * 64)]
        c += [V("v_cvt_pk_bf16_f32", "v%d" % (s + k), "v%d" % (s + 2 * k), "v%d" % (s + 2 * k + 1)) for k in range(4)]
        c += [vstore(R("v", s, 4), vX, sOut, "s100", 0, tag="out")]
    if CFG["stamps"]:
        c += [waitall()] + stamp() + [S("s_lshl_b32", "s100", "s2", 3), S("s_add_u32", "s100", "s100", "s28"), S("s_lshl_b32", "s100", "s100", 8),
                                      S("s_add_u32", "s100", "s100", WS_T)] + srd(4, "s90", "s91", "s100", 256) + \
             [V("v_lshrrev_b32", "v16", 2, vL16), vstore(vStamp, "v16", sC, "0", 0, tag="st", op="buffer_store_dword")]
    c += [raw("s_endpgm")]
    P.block("L_f%d" % v, c)


def gen():
    P = Prog("fused")
    pre = q_pre(0)
    c = setup1()
    for a, d, b in pre[:5]:
        c += a + [d] + b
    c += interleave(setup2(), pre[5:])
    P.block("L_setup", c + stamp() + q_head(0))
    cnt_load = vload("v%d" % (TMP + 3), vL16, sC, "0", 0, "sc1", tag="Cp", op="buffer_load_dword")
    cnt_test = [V("v_readfirstlane_b32", "s3", "v%d" % (TMP + 3)), S("s_cmp_ge_u32", "s3", 16)]
    for rnd in range(2):
        P.block("L_q%d" % rnd, q_phase(rnd) + stamp() + ([branch("s_branch L_sm1")] if rnd else []))
        for j in range(-1, 15):
            lab = "L_sm1" if j < 0 else "L_s0" if j == 0 else "L_s%d" % (1 + (j - 1) % 3)
            P.block(lab, a_step(rnd, j), align=(6 if j == 1 else 3 if j < 0 else None))
        P.block("L_t", [o for _, _, o in softmax_sched(15, 120, 200)], align=6)
        P.block("L_tr", a_tail_head(rnd))
        ins, rest = a_tail(rnd)
        extra = {NSH + n: [rest[n]] for n in range(len(rest))}
        if rnd == 0:
            c = ins + stamp() + [S("s_add_u32", "s16", "s16", 4 * 196608), S("s_addc_u32", "s17", "s17", 0),
                                 S("s_add_u32", "s20", "s20", 4 * 196608), S("s_addc_u32", "s21", "s21", 0), S("s_mov_b32", "s30", 1)]
            P.block("L_t0", c + a_epilogue(rnd, extra, q_head(1)))
        else:
            P.block("L_t1", ins + stamp() + [waitv("Cp")] + cnt_test + [branch("s_cbranch_scc0 L_w1")], align=6)
            ol = sum([o_loads(i, False) for i in range(NW2 - 1)], [])
            for k, e in enumerate(ol):
                extra.setdefault(min(5 + k, 29), []).append(e)
            P.block("L_t2", a_epilogue(rnd, extra, o_head()) + stamp())
    for i in range(48):
        lab = "L_o%d" % i if i < 19 else "L_k%d" % (1 + (i - 1) % 6)
        P.block(lab, o_step(i), align=(6 if i == 19 else None))
    P.block("L_e", stamp() + [S("s_cmp_eq_u32", "s80", 1), branch("s_cbranch_scc1 L_e1"), S("s_cmp_eq_u32", "s80", 2), branch("s_cbranch_scc1 L_e2"),
                              S("s_cmp_eq_u32", "s80", 3), branch("s_cbranch_scc1 L_e3")], align=6)
    for v in range(4):
        final_variant(P, v)
    for lab, back, ld, test in (("L_w1", "L_t2", cnt_load, cnt_test), ("L_w2", "L_k1", flag_load("s82", "F2s"), flag_test(1))):
        a, b = spin(lab, back, ld, test)
        P.block(lab, [waitall(True, False)] + a)
        P.block(lab + "_l", b)
    slow_blocks(P)
    P.block("L_end", [raw("s_endpgm")])
    return P


def generate(verbose=False):
    global _sm_plan
    _sm_plan = None
    p = gen()
    n = NAME + "_kernel"
    s = "; Two attention blocks (Q projection, softmax(QK^T)V, output projection) in one persistent kernel.\n"
    s += "; 256 workgroups of 4 waves; each does 2 batches x 2 heads of attention, then a 320x160 output tile over 8 heads.\n"
    s += "; @launch grid=(256,1,1) block=(256,1,1) lds=163840\n"
    s += '.amdgcn_target "amdgcn-amd-amdhsa--gfx950"\n.text\n'
    s += ".globl %s\n.p2align 8\n.type %s,@function\n%s:\n" % (n, n, n)
    s += p.emit()
    if verbose:
        for lab, st in p.stats.items():
            print("%-10s instrs %4d mfma %4d nops %d" % (lab, *st))
    s += '.section .rodata,"a"\n.p2align 6\n'
    s += """.amdhsa_kernel %s
  .amdhsa_next_free_vgpr 512
  .amdhsa_next_free_sgpr 102
  .amdhsa_accum_offset 256
  .amdhsa_group_segment_fixed_size 0
  .amdhsa_kernarg_size 104
  .amdhsa_user_sgpr_count 2
  .amdhsa_user_sgpr_kernarg_segment_ptr 1
  .amdhsa_system_sgpr_workgroup_id_x 1
.end_amdhsa_kernel
""" % n
    return s


if __name__ == "__main__":
    out = sys.argv[1] if len(sys.argv) > 1 else "cdna_kernels/%s.s" % NAME
    for a in sys.argv[2:]:
        k, v = a.split("=")
        CFG[k] = (v == "1") if k == "stamps" else v.replace("+", " ")
    open(out, "w").write(generate(verbose=True))
```

```python
import math, struct, sys
from asmgen import *
from smplan import make_plan, make_plan_pk

NAME = "concat_heads__gqa_block_cached__mha_block_cached__near_ridge"
CFG = dict(kv_flags="nt", w_flags="", x_flags="", ost_flags="sc1", old_flags="sc1", wo_flags="", pst_flags="sc1", pld_flags="sc1",
           stamps=False, dbg="", rot2="1", rot1="1", xdelay="100", k0at="13", v0at="3", lolim="-40", hilim="40", snake="1",
           nd0="3", nd1="3", stsp="6", npre0="16", osig="14", opoll="17", nq="21", pf="1", pk="0")

KB, VB = 0, 73728
SLOT2 = 24576
WRING, WSLOT, NW1, NW2 = 98304, 12320, 5, 6
LFLAG = 160000
WS_O = 0
WS_P = 2 * 16 * 32 * 61440
WS_F = WS_P + 4 * 6553600
WS_T = WS_F + 16384


def f32bits(x):
    return struct.unpack("<I", struct.pack("<f", x))[0]


SCALE = f32bits(math.log2(math.e) / math.sqrt(192.0))


def V(op, d, *s, **k):
    return valu(op, d, *s, **k)


def S(op, d, *s):
    return salu(op, d, *s)


def srd(base, lo, hi, off, nrec):
    return [S("s_add_u32", "s%d" % base, lo, off), S("s_addc_u32", "s%d" % (base + 1), hi, 0),
            S("s_mov_b32", "s%d" % (base + 2), nrec), S("s_mov_b32", "s%d" % (base + 3), "0x20000")]


def lane_rowchunk(p, vrow, vc, vl, vt):
    return [V("v_add_u32", vc, p * 64, vl), V("v_mul_u32_u24", vrow, 2731, vc), V("v_lshrrev_b32", vrow, 16, vrow),
            V("v_mul_u32_u24", vt, 24, vrow), V("v_sub_u32", vc, vc, vt)]


vL16, vX, vWd, vWr, vKV = "v0", "v1", ["v2", "v3", "v4"], ["v5", "v6"], ["v7", "v8", "v9"]
vKr, vVr, vXr, vOne, vStamp = ["v10", "v13"], ["v11", "v206", "v207", "v208"], ["v12", "v13"], "v14", "v15"
QACC, QB, ZB, LB, MB, RCP, TMP = 16, 16, 136, 196, 215, 220, 230
OACC = 16
FR = 240
sC, sX, sW, sK, sV, sO = "s[4:7]", "s[8:11]", "s[12:15]", "s[16:19]", "s[20:23]", "s[24:27]"
sOL, sFp, sWo, sP, sOut, sFs = "s[44:47]", "s[48:51]", "s[64:67]", "s[68:71]", "s[72:75]", "s[76:79]"
SM = 52


def stamp():
    if not CFG["stamps"]:
        return []
    return [raw("s_memtime s[92:93]", wr="s[92:93]"), raw("s_memrealtime s[94:95]", wr="s[94:95]"),
            S("s_mov_b32", "s97", "m0"), S("s_mov_b32", "m0", "s96"), waitall(False, True),
            V("v_writelane_b32", vStamp, "s92", "m0"), S("s_add_u32", "m0", "s96", 1), nop(1),
            V("v_writelane_b32", vStamp, "s94", "m0"), S("s_add_u32", "s96", "s96", 2), S("s_mov_b32", "m0", "s97")]


def frag(n):
    return FR + 4 * (n % 4)


def qorder(n):
    return range(4, -1, -1) if (n & 1 and int(CFG["snake"])) else range(5)


def setup1():
    c = [S("s_cmp_ge_u32", "s2", 256), branch("s_cbranch_scc1 L_end")]
    c += [raw("s_load_dwordx16 s[64:79], s[0:1], 0", wr="s[64:79]"),
          raw("s_load_dwordx8 s[80:87], s[0:1], 64", wr="s[80:87]"),
          raw("s_load_dwordx2 s[88:89], s[0:1], 96", wr="s[88:89]")]
    if CFG["stamps"]:
        c += [S("s_mov_b32", "s96", 0), V("v_mov_b32", vStamp, -1), S("s_mov_b32", "m0", 0)] + stamp()
    c += [V("v_readfirstlane_b32", "s28", "v0"), V("v_and_b32", "v20", 63, "v0"),
          S("s_and_b32", "s100", "s2", 7), S("s_lshr_b32", "s101", "s2", 3), S("s_lshr_b32", "s90", "s100", 2),
          S("s_and_b32", "s91", "s100", 1), S("s_lshl_b32", "s91", "s91", 2), S("s_and_b32", "s3", "s101", 3),
          S("s_add_u32", "s91", "s91", "s3"), S("s_bfe_u32", "s98", "s101", (2 << 16) | 2),
          S("s_and_b32", "s99", "s100", 2), S("s_lshr_b32", "s100", "s101", 4), S("s_add_u32", "s99", "s99", "s100"),
          S("s_lshr_b32", "s28", "s28", 6)]
    if int(CFG["pf"]):
        c += code_prefetch("L_q0", "L_w1", 7, 32, "a239")
    if int(CFG["rot1"]):
        c += [S("s_lshr_b32", "s100", "s101", 2), S("s_add_u32", "s100", "s100", "s3")]
        for _ in range(2):
            c += [S("s_sub_u32", "s101", "s100", 5), S("s_cselect_b32", "s100", "s100", "s101")]
    else:
        c += [S("s_mov_b32", "s100", 0)]
    for m in range(5):
        c += [S("s_add_u32", "s101", "s100", m), S("s_sub_u32", "s29", "s101", 5), S("s_cselect_b32", "s101", "s101", "s29"),
              S("s_lshl_b32", "s%d" % (SM + m), "s101", 7), S("s_add_u32", "s%d" % (SM + 5 + m), "s%d" % (SM + m), 640)]
    if int(CFG["rot2"]):
        c += [S("s_xor_b32", "s62", "s3", "s98"), S("s_lshl_b32", "s62", "s62", int(CFG["rot2"]) - 1)]
    else:
        c += [S("s_mov_b32", "s62", 0)]
    c += [S("s_lshr_b32", "s92", "s28", 1), S("s_and_b32", "s93", "s28", 1),
          S("s_lshl_b32", "s94", "s91", 1), S("s_add_u32", "s94", "s94", "s92"),
          S("s_lshl_b32", "s95", "s99", 3), S("s_add_u32", "s95", "s95", "s98")]
    c += [S("s_mul_i32", "s31", "s28", 3080), S("s_add_u32", "s31", "s31", WRING),
          S("s_lshl_b32", "s38", "s28", 11), S("s_add_u32", "s38", "s38", 8192)]
    c += [V("v_and_b32", "v21", 15, "v20"), V("v_lshrrev_b32", "v22", 4, "v20"),
          V("v_bfe_u32", "v23", "v20", 2, 2), V("v_and_b32", "v24", 3, "v20")]
    c += [V("v_lshrrev_b32", "v25", 3, "v20"), V("v_mul_u32_u24", "v25", 1280, "v25"), V("v_and_b32", "v26", 7, "v20"),
          V("v_lshlrev_b32", "v27", 1, "v22"), V("v_xor_b32", "v26", "v26", "v27"), V("v_lshl_add_u32", vX, "v26", 4, "v25")]
    c += [S("s_mul_i32", "s100", "s28", 8 * 12288), S("s_mul_i32", "s101", "s93", 6144)]
    for p in range(3):
        c += lane_rowchunk(p, "v25", "v26", "v20", "v30")
        c += [V("v_bfe_u32", "v27", "v25", 1, 1), V("v_lshlrev_b32", "v27", 2, "v27"), V("v_xor_b32", "v27", "v27", "v26"),
              V("v_mul_u32_u24", "v28", 12288, "v25"), V("v_lshl_add_u32", "v28", "v27", 4, "v28"),
              V("v_add_u32", "v28", "s100", "v28"), V("v_subrev_u32", vWd[p], p * 1024, "v28")]
        c += [V("v_bfe_u32", "v27", "v25", 1, 2), V("v_lshlrev_b32", "v27", 1, "v27"), V("v_xor_b32", "v27", "v27", "v20"),
              V("v_lshlrev_b32", "v27", 4, "v27"), V("v_add_u32", vKV[p], "s101", "v27")]
    c += [raw("s_waitcnt lgkmcnt(0)")]
    c += [S("s_cmp_eq_u32", "s90", 0)]
    for k in range(5):
        c += [S("s_cselect_b64", "s[%d:%d]" % (64 + 2 * k, 65 + 2 * k), "s[%d:%d]" % (64 + 2 * k, 65 + 2 * k), "s[%d:%d]" % (74 + 2 * k, 75 + 2 * k))]
    c += [S("s_mul_i32", "s100", "s94", 204800), S("s_mul_i32", "s101", "s93", 102400), S("s_add_u32", "s100", "s100", "s101")]
    c += srd(8, "s64", "s65", "s100", 0 if "noX" in CFG["dbg"] else 102400)
    c += [S("s_mul_i32", "s100", "s95", 384), S("s_sub_u32", "s101", 640 * 12288, "s100")]
    c += srd(12, "s70", "s71", "s100", 4 * 384 if "noW" in CFG["dbg"] else "s101")
    return c


def code_prefetch(lab_from, lab_to, per, vt, vd):
    a, b = "v%d" % vt, "v%d" % (vt + 1)
    return [raw("s_getpc_b64 s[40:41]", wr="s[40:41]"),
            S("s_add_u32", "s40", "s40", "%s-." % lab_from), S("s_addc_u32", "s41", "s41", 0),
            S("s_lshr_b32", "s29", "s2", 3), S("s_lshl_b32", "s29", "s29", 2), S("s_add_u32", "s29", "s29", "s28"), S("s_mul_i32", "s29", "s29", per),
            S("s_mov_b32", "s30", "%s-%s" % (lab_to, lab_from)),
            V("v_min_u32", a, per - 1, "v20"), V("v_add_u32", a, "s29", a), V("v_lshlrev_b32", a, 7, a), V("v_min_u32", a, "s30", a),
            V("v_mov_b32", b, "s41"),
            I("v_add_co_u32 %s, vcc, s40, %s" % (a, a), "valu", rd=["s40", a], wr=[a, "vcc"]), nop(2),
            I("v_addc_co_u32 %s, vcc, 0, %s, vcc" % (b, b), "valu", rd=[b], wr=[b, "vcc"]),
            I("global_load_dword %s, v[%d:%d], off" % (vd, vt, vt + 1), "vld", rd=[a, b], wr=vd, tag="pf")]


def setup2():
    c = []
    nkv = 0 if "noKV" in CFG["dbg"] else 196608
    c += [S("s_lshl_b32", "s100", "s94", 5), S("s_add_u32", "s3", "s100", "s95"), S("s_mul_i32", "s100", "s3", 196608)]
    c += srd(16, "s66", "s67", "s100", nkv)
    c += srd(20, "s68", "s69", "s100", nkv)
    c += [S("s_lshl_b32", "s100", "s90", 9), S("s_add_u32", "s100", "s100", "s3"), S("s_mul_i32", "s100", "s100", 61440),
          S("s_mul_i32", "s101", "s93", 5120), S("s_add_u32", "s100", "s100", "s101"), S("s_add_u32", "s100", "s100", WS_O)]
    c += srd(24, "s88", "s89", "s100", 61440 - 5120)
    c += [S("s_mul_i32", "s101", "s98", 61440), S("s_sub_u32", "s100", "s100", "s101")]
    c += srd(44, "s88", "s89", "s100", 0 if "noX" in CFG["dbg"] else 8 * 61440 - 5120)
    c += [S("s_lshl_b32", "s3", "s90", 3), S("s_add_u32", "s3", "s3", "s91"), S("s_lshl_b32", "s100", "s3", 4)]
    c += srd(4, "s86", "s87", "s100", 0)
    c += srd(48, "s88", "s89", WS_F, 0)
    c += [S("s_mul_i32", "s100", "s98", 320), S("s_and_b32", "s29", "s98", 1), S("s_lshl_b32", "s101", "s29", 6),
          S("s_sub_u32", "s100", "s100", "s101"), S("s_sub_u32", "s101", 1536 * 1280, "s100"),
          S("s_mul_i32", "s30", "s99", 1536 * 1280), S("s_add_u32", "s100", "s100", "s30")]
    c += srd(64, "s72", "s73", "s100", 0 if "noW" in CFG["dbg"] else "s101")
    c += [S("s_lshl_b32", "s3", "s3", 2), S("s_add_u32", "s30", "s3", "s98"), S("s_mul_i32", "s100", "s30", 409600),
          S("s_mul_i32", "s101", "s28", 25600), S("s_add_u32", "s100", "s100", "s101"), S("s_add_u32", "s100", "s100", WS_P)]
    c += srd(68, "s88", "s89", "s100", 3 * 102400 + 25600)
    c += [S("s_lshl_b32", "s100", "s94", 1), S("s_add_u32", "s100", "s100", "s93"), S("s_mul_i32", "s100", "s100", 80 * 2560),
          S("s_mul_i32", "s101", "s90", 1280), S("s_add_u32", "s100", "s100", "s101"),
          S("s_mul_i32", "s101", "s98", 320), S("s_add_u32", "s100", "s100", "s101")]
    c += srd(72, "s84", "s85", "s100", 79 * 2560 + 320)
    c += srd(76, "s88", "s89", WS_F, 0)
    if CFG["stamps"]:
        c += [S("s_mov_b32", "s90", "s88"), S("s_mov_b32", "s91", "s89")]
    c += [S("s_mov_b32", "s80", "s99"), S("s_mov_b32", "s81", "s29"),
          S("s_add_u32", "s82", "s3", "s99"), S("s_lshl_b32", "s82", "s82", 7),
          S("s_lshl_b32", "s83", "s30", 7), S("s_add_u32", "s83", "s83", 8192),
          S("s_lshl_b32", "s84", "s98", 2), S("s_add_u32", "s84", "s84", "s82"),
          S("s_lshl_b32", "s85", "s99", 2), S("s_add_u32", "s85", "s85", "s83"),
          S("s_cmp_eq_u32", "s28", 0), S("s_cselect_b32", "s37", 4, 0)]
    c += [V("v_lshlrev_b32", vL16, 4, "v20"), V("v_mov_b32", vOne, 0)]
    c += [S("s_add_u32", "s78", "s84", "s37"), vstore(vOne, vL16, sFs, "s84", 0, "sc1", tag="F", op="buffer_store_dword"),
          S("s_add_u32", "s78", "s85", "s37"), vstore(vOne, vL16, sFs, "s85", 0, "sc1", tag="F", op="buffer_store_dword")]
    c += [S("s_mul_i32", "s33", "s28", 6144), S("s_add_u32", "s34", "s33", VB), S("s_add_u32", "s33", "s33", KB)]
    c += [S("s_mov_b32", "s42", hex(SCALE)), S("s_mov_b32", "s43", hex(SCALE)), S("s_mov_b32", "s30", 0)]
    c += [V("v_lshlrev_b32", "v25", 7, "v21"), V("v_add_u32", "v25", "s38", "v25"),
          V("v_bfe_u32", "v26", "v21", 1, 2), V("v_lshlrev_b32", "v26", 1, "v26"), V("v_xor_b32", "v26", "v26", "v22"),
          V("v_lshl_add_u32", vXr[0], "v26", 4, "v25"), V("v_xor_b32", vXr[1], 64, vXr[0])]
    c += [V("v_mov_b32", vOne, 1)]
    c += [V("v_mul_u32_u24", "v25", 3080, "v22"), V("v_mul_u32_u24", "v26", 384, "v23"), V("v_add_u32", "v25", "v25", "v26"),
          V("v_add_u32", "v25", WRING, "v25"), V("v_lshrrev_b32", "v26", 1, "v23"), V("v_lshlrev_b32", "v26", 2, "v26")]
    for m in range(2):
        c += [V("v_or_b32", "v27", 4 * m, "v24"), V("v_xor_b32", "v27", "v27", "v26"), V("v_lshl_add_u32", vWr[m], "v27", 4, "v25")]
    c += [S("s_mul_i32", "s100", "s92", 12288), S("s_add_u32", "s101", "s100", VB), S("s_add_u32", "s100", "s100", KB)]
    c += [V("v_mul_u32_u24", "v25", 384, "v21"), V("v_add_u32", "v25", "s100", "v25"),
          V("v_bfe_u32", "v26", "v21", 1, 2), V("v_lshlrev_b32", "v26", 1, "v26")]
    c += [V("v_xor_b32", "v27", "v22", "v26"), V("v_lshl_add_u32", vKr[0], "v27", 4, "v25")]
    c += [V("v_lshrrev_b32", "v28", 2, "v20"), V("v_mul_u32_u24", "v25", 384, "v28"), V("v_add_u32", "v25", "s101", "v25"),
          V("v_and_b32", "v27", 1, "v24"), V("v_lshl_add_u32", "v25", "v27", 3, "v25"),
          V("v_bfe_u32", "v26", "v28", 1, 2), V("v_lshlrev_b32", "v26", 1, "v26"), V("v_lshrrev_b32", "v29", 1, "v24")]
    c += [V("v_xor_b32", "v27", "v29", "v26"), V("v_lshl_add_u32", vVr[0], "v27", 4, "v25")]
    return c


def interleave(body, seq, first=0, every=None):
    every = every or max(1, (len(body) - first) // max(1, len(seq)))
    out = []
    seq = list(seq)
    due = first
    for k, i in enumerate(body):
        uses_scc = i.text.startswith(("s_addc", "s_cselect", "s_cbranch"))
        if seq and k >= due and not uses_scc:
            pre, m, post = seq.pop(0)
            out += pre + [m] + post
            due = k + every
        out.append(i)
    for pre, m, post in seq:
        out += pre + [m] + post
    return out


def wslot(i):
    return i % NW1


def w_dma(rnd, i):
    lo = WRING + wslot(i) * WSLOT
    pre = [S("s_add_u32", "m0", "s31", wslot(i) * WSLOT),
           S("s_mul_i32", "s32", "s%d" % (SM + (i >> 1)), 6144) if not i & 1 else S("s_add_u32", "s32", "s32", 32 * 12288)]
    d = [dma(vWd[p], sW, "s32", p * 1024, CFG["w_flags"], tag=("W", rnd, i), lds=(lo, lo + WSLOT, ("W", rnd, i))) for p in range(3)]
    return [(pre, d[0], []), ([], d[1], []), ([], d[2], [])]


def kv_dma(which, rnd, j, slot=None):
    base, sb, so, sr = (KB, "s33", "s35", sK) if which == "K" else (VB, "s34", "s36", sV)
    slot = j % 3 if slot is None else slot
    lo = base + slot * SLOT2
    tag = (which, rnd, j)
    out = []
    for u in range(2):
        for p in range(3):
            pre = [S("s_add_u32", "m0", sb, slot * SLOT2 + u * 3072)] if p == 0 else []
            post = [S("s_add_u32", so, so, 3072 if u == 0 else 12288 - 3072)] if p == 2 else []
            out.append((pre, dma(vKV[p], sr, so, p * 1024, CFG["kv_flags"], tag=tag, lds=(lo, lo + SLOT2, tag)), post))
    return out


NXB = 8


def xquad(rnd, i, qt):
    b = i % NXB
    t = b if rnd == 0 else (2 * b + 1 if b < 6 else 2 * (b - 6))
    return (t * 5 + qt) * 4


def xreg(rnd, i, qt):
    return R("a", xquad(rnd, i, qt), 4)


def x_dma(rnd, m, qt, sig):
    tag = ("X", rnd, m, qt)
    out = []
    for u in range(2):
        pre = [S("s_add_u32", "m0", "s38", (sig - 1) * 8192)] if u == 0 else []
        pre += [S("s_add_u32", "s39", "s%d" % (SM + m), qt * 20480 + u * (10240 - 1024))]
        out.append((pre, dma(vX, sX, "s39", u * 1024, CFG["x_flags"], tag=tag, lds=(sig * 8192, sig * 8192 + 8192, tag)), []))
    return out


def x_read(rnd, m, qt, e, sig):
    return dsread("ds_read_b128", xreg(rnd, 2 * m + e, qt), vXr[e], (sig - 1) * 8192, tag=("Xf", rnd, 2 * m + e, qt),
                  lds=(sig * 8192, sig * 8192 + 8192, ("X", rnd, m, qt)))


def q_pre(rnd):
    seq = w_dma(rnd, 0)
    for qt in range(5):
        seq += x_dma(rnd, 0, qt, 1 + qt)
    seq += w_dma(rnd, 1)
    for qt in range(3):
        seq += x_dma(rnd, 1, qt, 6 + qt)
    seq += w_dma(rnd, 2) + w_dma(rnd, 3)
    return seq[:int(CFG["npre0"])] if rnd == 0 else seq


def w_reads(rnd, i, n):
    p, T = n >> 1, n & 1
    lo = WRING + wslot(i) * WSLOT
    return [dsread("ds_read_b64_tr_b16", R("a", frag(n) + 2 * half, 2), vWr[p & 1],
                   wslot(i) * WSLOT + (p >> 1) * 128 + T * 8 + half * 1536, tag=("Wf", rnd, i, n),
                   lds=(lo, lo + WSLOT, ("W", rnd, i))) for half in range(2)]


def place_seq(G, g0, step, seq):
    g = g0
    for pre, m, post in seq:
        place_vm(G, g, pre, m, post)
        g += step


def place_vm(G, g, pre, m, post):
    gg = G.put_m(g, m)
    assert gg == g, "gap %d busy" % g
    for k, p in enumerate(pre):
        G.put_s(min(g - 3 + k, g - 1) if g >= 3 else 0, p)
    for p in post:
        G.put_s(g + 1, p)


def o_store(rnd, n, src):
    p, qt = n // 5, n % 5
    return ([S("s_mov_b32", "s88", p * 10240 + qt * 1024)], vstore(src, vL16, sO, "s88", 0, CFG["ost_flags"], tag=("O", rnd)), [])


def parked(n):
    return R("a", (2 * (n // 5) * 5 + n % 5) * 4, 4)


def q_cvt(n):
    s = QACC + 8 * n
    return [V("v_cvt_pk_bf16_f32", "v%d" % (QB + 4 * n + k), "v%d" % (s + 2 * k), "v%d" % (s + 2 * k + 1)) for k in range(4)]


def q_head(rnd):
    return [S("s_mov_b32", "s35", 0), S("s_mov_b32", "s36", 0), V("v_xor_b32", vXr[1], 64, vXr[0]),
            waitv(("W", rnd, 0), ("X", rnd, 0, 4)), barrier()] + \
        sum([w_reads(rnd, 0, n) for n in range(3)], []) + [x_read(rnd, 0, qt, 0, 1 + qt) for qt in range(5)]


def q_phase(rnd):
    mf = []
    for i in range(20):
        for n in range(12):
            p, T = n >> 1, n & 1
            for qt in qorder(n):
                d = R("v", QACC + (p * 5 + qt) * 8 + 4 * T, 4)
                mf.append(mfma(d, R("a", frag(n), 4), xreg(rnd, i, qt), "0" if i == 0 else d))
    G = Gaps(mf)
    for f in range(240):
        ff = f + 3
        if ff < 240:
            rd = w_reads(rnd, ff // 12, ff % 12)
            G.put_m(5 * f, rd[0])
            G.put_m(5 * f + 1, rd[1])
        else:
            G.put_m(5 * f, k_read(rnd, 0, ff - 240))
        if f < 239:
            tags = [("Wf", rnd, (f + 1) // 12, (f + 1) % 12)]
            if f % 12 == 11:
                tags += [("Xf", rnd, (f + 1) // 12, qt) for qt in range(5)]
        else:
            tags = [("Kf", rnd, 0, 0)]
        G.put_s(5 * f + 4, waitl(*tags))
    for i in range(20):
        G.put_s(60 * i + 44, waitv(("W", rnd, i + 1) if i < 19 else ("K", rnd, 0), ("O", 0) if (rnd and i == 19) else None), barrier())
    k0at, v0at, delay = int(CFG["k0at"]), int(CFG["v0at"]), int(CFG["xdelay"])
    npre = len(q_pre(rnd))
    dvfree = [True] * 240
    sfree = {sig: 0 for sig in range(1, 9)}
    qfree = {}
    nd = int(CFG["nd0"])
    if rnd:
        for n in range(nd, 30):
            qfree[(2 * (n // 5) * 5 + n % 5) * 4] = INF
    last_rd = 0

    def reads(m, qt, sig, gmin, es=(0, 1)):
        nonlocal last_rd
        first = True
        for e in es:
            i = 2 * m + e
            g = max(gmin, last_rd, 60 * (i - NXB + 1), qfree.get(xquad(rnd, i, qt), 0))
            assert g < INF
            n = (g + 2) // 5
            while not dvfree[n]:
                n += 1
            dvfree[n] = False
            g = 5 * n + 2
            assert g < 60 * i - 5, "x fragment (%d,%d,%d) late: gap %d" % (m, qt, e, g)
            if first:
                G.put_s(g, waitv(("X", rnd, m, qt)))
                first = False
            assert G.put_m(g, x_read(rnd, m, qt, e, sig)) == g
            last_rd = g
        sfree[sig] = last_rd + 16
    for qt in range(5):
        reads(0, qt, 1 + qt, 0, es=(1,))
    nx1 = max(0, min(3, (npre - 16) // 2))
    for qt in range(nx1):
        reads(1, qt, 6 + qt, 30)
    pieces = [(1, qt) for qt in range(nx1, 5)] + [(m, qt) for m in range(2, 10) for qt in range(5)]
    wq = [i for i in range(2, 20) if not (i < 4 and npre >= 22 + 3 * (i - 1))]
    soft = []
    kvq = [("V", 0, 0), ("V", 0, 1), ("K", 0, 0), ("K", 0, 1), ("K", 1, 0), ("K", 1, 1), ("K", 2, 0), ("K", 2, 1), ("V", 1, 0), ("V", 1, 1)]
    stq = list(range(nd, 30)) if rnd else []
    used = ["."] * 240

    def after_bar(g):
        return 12 * ((g - 44 + 59) // 60) + 9

    def kv_release(wh, j):
        if (wh, j) == ("V", 0):
            return 12 * v0at
        if (wh, j) == ("K", 0):
            return 12 * k0at
        if (wh, j) == ("V", 1):
            return 12 * 17 + 9
        if pieces:
            return INF
        return after_bar(max(sfree[sg] for sg in ((3, 4, 5) if j == 1 else (6, 7, 8))))
    n = 0
    while n < 240:
        cand = []
        if wq and n >= (12 * (wq[0] - 4) + 9 if wq[0] >= NW1 else 0):
            cand.append((60 * (wq[0] - 1) + 44 - 150, "W"))
        if pieces:
            m, qt = pieces[0]
            sg = [x for x in range(1, 9) if sfree[x] <= 5 * n and not (x <= 2 and 5 * n + delay + 50 > 60 * (k0at - 1) + 44)]
            blocked = any(qfree.get(xquad(rnd, 2 * m + e, qt), 0) >= INF for e in range(2))
            if sg and not blocked:
                cand.append((120 * m - 40 - 10 * (4 - qt) - delay, "x"))
        if kvq and n >= kv_release(*kvq[0][:2]):
            cand.append((5 * kv_release(*kvq[0][:2]) + 30, "k"))
        if stq and n >= (stq[0] - nd) * int(CFG["stsp"]):
            cand.append((5 * (stq[0] - nd) * int(CFG["stsp"]) + 30, "s"))
        if not cand:
            n += 1
            continue
        kind = min(cand)[1]
        if kind == "W":
            seq = w_dma(rnd, wq.pop(0))
        elif kind == "x":
            m, qt = pieces.pop(0)
            sig = min(sg, key=lambda x: (sfree[x], x))
            seq = x_dma(rnd, m, qt, sig)
            dl = min(delay, 120 * m - 30 - 10 * (4 - qt) - (5 * n + 8))
            reads(m, qt, sig, 5 * n + 8 + dl)
            if CFG.get("verbose"):
                print("x piece", m, qt, "slot", sig, "dma gap", 5 * n + 3, "delay", dl, "read done", last_rd)
        elif kind == "k":
            wh, j, u = kvq.pop(0)
            seq = kv_dma(wh, rnd, j)[3 * u:3 * u + 3]
        else:
            f = stq.pop(0)
            seq = [o_store(0, f, parked(f))]
            qfree[(2 * (f // 5) * 5 + f % 5) * 4] = 5 * n + 8
        for pre, mm, post in seq:
            place_vm(G, 5 * n + 3, pre, mm, post)
            used[n] = kind
            n += 1
    assert not (wq or pieces or kvq or stq)
    if rnd:
        assert used[238] == "."
        place_vm(G, 5 * 238 + 3, [S("s_mov_b32", "s6", "s37")],
                 I("buffer_atomic_add %s, %s, %s, 0 offen" % (vOne, vL16, sC), "vst", rd=[vOne, vL16, sC], tag="C"), [])
        G.put_s(1150, S("s_add_u32", "s24", "s24", 4 * 61440))
        G.put_s(1150, S("s_addc_u32", "s25", "s25", 0))
    if CFG.get("verbose"):
        print("vm slots:", " ".join("".join(used[12 * i:12 * i + 12]) for i in range(20)))
    assert last_rd < 1140
    G.put_v(1141, V("v_xor_b32", vKr[1], 64, vKr[0]))
    g = 0
    over = []
    for nn in range(int(CFG["nq"])):
        for c in q_cvt(nn):
            g = max(g, 1140 + 10 * (nn // 5) + 13)
            while g < 1200 and G.cost(g) + max(0, len(G.s[g]) - 1) > 1:
                g += 1
            if g < 1200:
                G.v[g].append(c)
            else:
                over.append(c)
    if CFG.get("verbose"):
        print("exposed cvt:", len(over))
    return [waitall(False, True)] + stamp() + G.flat() + over


def k_read(rnd, j, n, real=True, slot=None):
    kt, ds = n // 6, n % 6
    slot = j % 3 if slot is None else slot
    lo = KB + slot * SLOT2
    return dsread("ds_read_b128", R("a", frag(n), 4), vKr[ds & 1], slot * SLOT2 + kt * 6144 + (ds >> 1) * 128, tag=("Kf", rnd, j, n),
                  lds=(lo, lo + SLOT2, ("K", rnd, j) if real else None))


def v_reads(rnd, j, t, slot=None):
    slot = j % 3 if slot is None else slot
    lo = VB + slot * SLOT2
    return [dsread("ds_read_b64_tr_b16", R("a", frag(t) + 2 * half, 2), vVr[t & 3], slot * SLOT2 + half * 6144 + (t >> 2) * 128,
                   tag=("Vf", rnd, j, t), lds=(lo, lo + SLOT2, ("V", rnd, j))) for half in range(2)]


def zbuf(k):
    return ZB + 20 * (k % 3)


def softmax_ops(n):
    t0, t1 = zbuf(n + 1), zbuf(n)
    ops = []
    for T in range(2):
        for qt in range(5):
            pk = CFG["pk"]
            for k in range(4):
                r = "v%d" % ((t0, t1)[T] + 4 * qt + k)
                r2 = R("v", (t0, t1)[T] + 4 * qt + (k & 2), 2)
                l = "v%d" % (LB + 2 * qt + (k & 1))
                if "M" not in pk:
                    ops.append(("m", T, qt, k, V("v_mul_f32", r, "s42", r)))
                elif not k & 1:
                    ops.append(("M", T, qt, k >> 1, V("v_pk_mul_f32", r2, r2, "s[42:43]")))
                ops.append(("e", T, qt, k, V("v_exp_f32", r, r)))
                if "A" not in pk:
                    ops.append(("a", T, qt, k, V("v_add_f32", l, l, r)))
                elif k & 1:
                    ops.append(("A", T, qt, k >> 1, V("v_pk_add_f32", R("v", LB + 2 * qt, 2), R("v", LB + 2 * qt, 2), r2)))
            if T:
                a, b = t0 + 4 * qt, t1 + 4 * qt
                for k, (d, s) in enumerate(((b + 3, b + 2), (b + 2, b), (b, a), (b + 1, a + 2))):
                    ops.append(("c", 1, qt, k, V("v_cvt_pk_bf16_f32", "v%d" % d, "v%d" % s, "v%d" % (s + 1))))
    return ops


_sm_plan = None


def softmax_plan():
    global _sm_plan
    if not _sm_plan:
        cost = [0] * 120
        for n in range(24):
            cost[5 * n] += 1
            if (n + 3) % 24 >= 12:
                cost[5 * n + 1] += 1
        for n in range(6):
            cost[5 * n + 3] += 1
            cost[5 * (n + 9) + 3] += 1
        for g in (44, 104, 119):
            cost[g] += 1
        pk = CFG["pk"]
        if pk == "0":
            _sm_plan = make_plan(cost, first=(31, 61))
        else:
            _sm_plan = make_plan_pk(cost, perk=int(pk[0]), pkmul="M" in pk, pkadd="A" in pk)
    return _sm_plan


def softmax_sched(n, lo, hi):
    plan = softmax_plan()
    return sorted([(plan[o[:4]], k + (1000 if o[0] in "MA" else 0), o[4]) for k, o in enumerate(softmax_ops(n)) if lo <= plan[o[:4]] < hi],
                  key=lambda x: x[:2])


def qk_mfmas(j):
    mf = []
    for n in range(12):
        kt, ds = n // 6, n % 6
        for qt in range(5):
            d = R("v", (zbuf(j + 1) if kt == 0 else zbuf(j)) + 4 * qt, 4)
            mf.append(mfma(d, R("a", frag(n), 4), R("v", QB + (ds * 5 + qt) * 4, 4), "0" if ds == 0 else d))
    return mf


def pv_mfmas(j, zero):
    mf = []
    for t in range(12):
        for qt in qorder(t):
            d = R("a", (t * 5 + qt) * 4, 4)
            mf.append(mfma(d, R("a", frag(t), 4), R("v", zbuf(j) + 4 * qt, 4), "0" if zero else d))
    return mf


def a_step(rnd, j):
    haspv = j >= 0
    G = Gaps(qk_mfmas(j + 1) + (pv_mfmas(j, j == 0) if haspv else [None] * 60))
    for n in range(24):
        nn = n + 3
        if nn < 12:
            G.put_m(5 * n, k_read(rnd, j + 1, nn))
        elif nn < 24:
            if haspv:
                rd = v_reads(rnd, j, nn - 12)
                G.put_m(5 * n, rd[0])
                G.put_m(5 * n + 1, rd[1])
        else:
            G.put_m(5 * n, k_read(rnd, j + 2, nn - 24, real=(j + 2 < 16)))
        nx = n + 1
        tag = ("Kf", rnd, j + 1, nx) if nx < 12 else ("Vf", rnd, j, nx - 12) if nx < 24 else ("Kf", rnd, j + 2, 0)
        G.put_s(5 * n + 4, waitl(tag))
    if haspv:
        G.put_s(44, waitv(("V", rnd, j)), barrier())
        if j > 0:
            place_seq(G, 3, 5, kv_dma("K", rnd, j + 3))
            place_seq(G, 48, 5, kv_dma("V", rnd, j + 2))
        G.put_s(104, waitv(("K", rnd, j + 2)), barrier())
        for g, _, o in softmax_sched(j, 120, 200):
            G.v[g - 120].append(o)
    else:
        G.put_s(24, barrier())
        place_seq(G, 28, 5, kv_dma("V", rnd, 2))
        G.put_s(59, waitv(("K", rnd, 1)), barrier())
        place_seq(G, 63, 10, kv_dma("K", rnd, 3))
        g = 0
        for nn in range(int(CFG["nq"]), 30):
            for c in q_cvt(nn):
                g = G.put_v(max(g, 3 if nn >= 25 else 0), c, limit=(17 if nn < 25 else 22) + nn % 5)
        for c in [V("v_mov_b32", "v%d" % (LB + qt), 0) for qt in range(10)] + [V("v_xor_b32", vVr[m], 32 * m, vVr[0]) for m in range(1, 4)]:
            g = G.put_v(g, c, limit=31)
        G.put_s(1, S("s_mov_b32", "s40", hex(f32bits(2.0 ** int(CFG["lolim"])))))
        G.put_s(2, S("s_mov_b32", "s41", hex(f32bits(2.0 ** int(CFG["hilim"])))))
    for g, _, o in softmax_sched(j + 1, 0, 120):
        G.v[g].append(o)
    ins = G.flat()
    if j == 0:
        ins += [S("s_mov_b32", "s29", 5)]
    if j > 0 and j % 3 == 2:
        if "ast" in CFG["dbg"]:
            ins += stamp()
        ins += [S("s_sub_u32", "s29", "s29", 1), S("s_cmp_eq_u32", "s29", 0), branch("s_cbranch_scc1 L_t")]
    if j > 0 and j % 3 == 0:
        ins += [branch("s_branch L_s1")]
    return ins


def a_tail_head(rnd):
    L = ["v%d" % (LB + 2 * k) for k in range(5)]
    a, b, t = "v%d" % TMP, "v%d" % (TMP + 1), "v%d" % (TMP + 2)
    c = [V("v_add_f32", L[k], L[k], "v%d" % (LB + 2 * k + 1)) for k in range(5)]
    for op in ("v_permlane32_swap_b32", "v_permlane16_swap_b32"):
        for stage in range(3):
            for qt in range(5):
                l, u = L[qt], "v%d" % (210 + qt)
                c += [V("v_mov_b32", u, l) if stage == 0 else V(op, u, l) if stage == 1 else V("v_add_f32", l, l, u)]
    c += [V("v_rcp_f32", "v%d" % (RCP + 2 * qt), L[qt]) for qt in range(5)]
    c += [V("v_max3_f32", a, L[0], L[1], L[2]), V("v_min3_f32", b, L[0], L[1], L[2]),
         V("v_max3_f32", a, a, L[3], L[4]), V("v_min3_f32", b, b, L[3], L[4]),
         V("v_cmp_lt_f32", "vcc", "s41", a), V("v_cmp_gt_f32", "s[100:101]", "s40", b),
         S("s_lshl_b32", "s3", "s28", 2), S("s_add_u32", "s3", "s3", LFLAG), V("v_mov_b32", b, "s3"),
         S("s_or_b64", "vcc", "vcc", "s[100:101]"), S("s_cselect_b32", "s3", 1, 0), V("v_mov_b32", a, "s3"),
         dswrite("ds_write_b32", b, a, 0, tag="lf"), V("v_mov_b32", t, LFLAG),
         S("s_cmp_eq_u32", "s30", 0), branch("s_cbranch_scc0 L_t1")]
    return c


def o_addr_setup():
    l, g, r, cc = "v%d" % (TMP + 8), "v%d" % (TMP + 9), "v%d" % (TMP + 10), "v%d" % (TMP + 11)
    a, b, d, e, t = ["v%d" % (TMP + 12 + k) for k in range(5)]
    c = [V("v_lshrrev_b32", l, 4, vL16), V("v_lshrrev_b32", g, 4, l), V("v_bfe_u32", r, l, 2, 2), V("v_and_b32", cc, 3, l),
         S("s_mul_i32", "s100", "s28", 4 * 1280), S("s_mul_i32", "s31", "s28", 3080)]
    for p in range(3):
        c += lane_rowchunk(p, a, b, l, t)
        c += [V("v_bfe_u32", d, a, 1, 1), V("v_lshlrev_b32", d, 2, d), V("v_xor_b32", d, d, b),
              V("v_lshrrev_b32", e, 2, a), V("v_mul_u32_u24", e, 12, e), V("v_add_u32", e, e, a),
              V("v_mul_u32_u24", e, 1280, e), V("v_lshl_add_u32", e, d, 4, e),
              V("v_add_u32", e, "s100", e), V("v_subrev_u32", vWd[p], p * 1024, e)]
    c += [V("v_mul_u32_u24", a, 3080, g), V("v_mul_u32_u24", b, 384, r), V("v_add_u32", a, a, b),
          V("v_lshrrev_b32", b, 1, r), V("v_lshlrev_b32", b, 2, b)]
    for m in range(2):
        c += [S("s_add_u32", "s100", "s81", m), S("s_and_b32", "s101", "s100", 1), S("s_lshl_b32", "s101", "s101", 2),
              S("s_lshr_b32", "s100", "s100", 1), S("s_lshl_b32", "s100", "s100", 7),
              V("v_or_b32", d, "s101", cc), V("v_xor_b32", d, d, b), V("v_lshl_add_u32", d, d, 4, a),
              V("v_add_u32", vWr[m], "s100", d)]
    c += [V("v_and_b32", a, 15, l), V("v_mul_u32_u24", a, 2560, a), V("v_lshl_add_u32", vX, g, 4, a)]
    return c


def a_tail(rnd):
    j = 15
    f4, t = R("v", TMP + 4, 4), "v%d" % (TMP + 2)
    head = []
    if rnd == 1:
        head += [S("s_mov_b32", "s6", 4), vload("v%d" % (TMP + 3), vL16, sC, "0", 0, "sc1", tag="Cp", op="buffer_load_dword")]
        head += o_addr_setup()
    head += [waitall(False, True), waitv(("V", rnd, 15), ("V", rnd, 16)), barrier(),
             dsread("ds_read_b128", f4, t, 0, tag="lfr")]
    head += sum([v_reads(rnd, j, k) for k in range(3)], []) + [waitl(("Vf", rnd, j, 0))]
    head += [V("v_or3_b32", t, "v%d" % (TMP + 4), "v%d" % (TMP + 5), "v%d" % (TMP + 6)), V("v_or_b32", t, t, "v%d" % (TMP + 7))]
    G = Gaps(pv_mfmas(j, False))
    for n in range(12):
        if n + 3 < 12:
            rd = v_reads(rnd, j, n + 3)
            G.put_m(5 * n, rd[0])
            G.put_m(5 * n + 1, rd[1])
        if n < 11:
            G.put_s(5 * n + 4, waitl(("Vf", rnd, j, n + 1)))
    G.v[0].append(V("v_readfirstlane_b32", "s3", t))
    G.put_s(3, S("s_cmp_lg_u32", "s3", 0), branch("s_cbranch_scc1 L_slow"))
    if rnd == 0:
        G.put_s(4, S("s_add_u32", "s12", "s12", 4 * 384), S("s_addc_u32", "s13", "s13", 0), S("s_sub_u32", "s14", "s14", 4 * 384))
        seq = q_pre(1)
    else:
        seq = o_pre_w()
    place_seq(G, 8, 5, seq[:11])
    g = 14
    for n in range(NSH):
        for c in o_pack(n, False):
            g = G.put_v(g, c)
    return head + G.flat(), seq[11:]


NSH = 3


def o_pack(n, packed_mul):
    p, qt = n // 5, n % 5
    t = 160 + 8 * (n % 4)
    c = [V("v_accvgpr_read_b32", "v%d" % (t + 4 * T + k), "a%d" % (((2 * p + T) * 5 + qt) * 4 + k)) for T in range(2) for k in range(4)]
    if packed_mul:
        c += [V("v_pk_mul_f32", R("v", t + 2 * k, 2), R("v", t + 2 * k, 2), R("v", RCP + 2 * qt, 2), mods="op_sel_hi:[1,0]") for k in range(4)]
    else:
        c += [V("v_mul_f32", "v%d" % (t + k), "v%d" % (t + k), "v%d" % (RCP + 2 * qt)) for k in range(8)]
    c += [V("v_cvt_pk_bf16_f32", "v%d" % (16 + 4 * n + k), "v%d" % (t + 2 * k), "v%d" % (t + 2 * k + 1)) for k in range(4)]
    return c


def a_epilogue(rnd, extra, head):
    nd = int(CFG["nd%d" % rnd])
    assert nd >= NSH
    c = []
    at = {NSH + (k * (30 - NSH)) // nd: k for k in range(nd)}
    for n in range(NSH, 30):
        w = o_pack(n, True)
        c += w[:8]
        for pre, d, post in extra.get(n, []):
            c += pre + [d] + post
        if n == 28:
            c += head
        c += w[8:]
        if n >= nd:
            q = (2 * (n // 5) * 5 + n % 5) * 4
            c += [V("v_accvgpr_write_b32", "a%d" % (q + k), "v%d" % (16 + 4 * n + k)) for k in range(4)]
        if n in at:
            assert at[n] <= n
            pre, d, post = o_store(rnd, at[n], R("v", 16 + 4 * at[n], 4))
            c += pre + [d] + post
    return c


def spin(label, back, load, test):
    return [S("s_mov_b32", "s87", "0x40000")], \
        [raw("s_sleep 4"), load, waitall(True, False)] + test + [branch("s_cbranch_scc1 %s" % back),
         S("s_sub_u32", "s87", "s87", 1), S("s_cmp_lg_u32", "s87", 0), branch("s_cbranch_scc1 %s_l" % label), branch("s_branch %s" % back)]


def slow_blocks(P):
    M = ["v%d" % (MB + k) for k in range(5)]

    def load(which, j):
        c = []
        for pre, d, post in kv_dma(which, "s", j, slot=0):
            c += pre + [d] + post
        return c

    def qk(j):
        c = []
        mf = qk_mfmas(0)
        for n in range(12):
            c += [k_read("s", j, n, slot=0), waitall(False, True)] + mf[5 * n:5 * n + 5]
        return c
    P.block("L_slow", [waitall(), barrier(), S("s_mov_b32", "s35", 0), S("s_mov_b32", "s29", 16)] +
            [V("v_mov_b32", m, "0xff800000") for m in M], align=6)
    for j in range(2):
        c = load("K", j) + [waitall(), barrier()] + qk(j) + [barrier()]
        for qt in range(5):
            for z in (zbuf(1), zbuf(0)):
                r = z + 4 * qt
                c += [V("v_max3_f32", M[qt], M[qt], "v%d" % r, "v%d" % (r + 1)), V("v_max3_f32", M[qt], M[qt], "v%d" % (r + 2), "v%d" % (r + 3))]
        c += [S("s_sub_u32", "s29", "s29", 1), S("s_cmp_lg_u32", "s29", 0), branch("s_cbranch_scc1 L_slow1")]
        P.block("L_slow1", c)
    c = []
    for op in ("v_permlane32_swap_b32", "v_permlane16_swap_b32"):
        for qt in range(5):
            u = "v%d" % (210 + qt)
            c += [V("v_mov_b32", u, M[qt]), V(op, u, M[qt]), V("v_max_f32", M[qt], M[qt], u)]
    c += [V("v_mov_b32", "v%d" % (LB + qt), 0) for qt in range(10)]
    c += [V("v_accvgpr_write_b32", "a%d" % k, 0) for k in range(240)]
    c += [S("s_mov_b32", "s35", 0), S("s_mov_b32", "s36", 0), S("s_mov_b32", "s29", 16),
          S("s_mov_b32", "s40", 0), S("s_mov_b32", "s41", "0x7f800000")]
    P.block("L_slow2", c)
    for j in range(10, 12):
        c = load("K", j) + load("V", j) + [waitall(), barrier()] + qk(j)
        for qt in range(5):
            for z in (zbuf(1), zbuf(0)):
                c += [V("v_sub_f32", "v%d" % (z + 4 * qt + k), "v%d" % (z + 4 * qt + k), M[qt]) for k in range(4)]
        c += [o[4] for o in softmax_ops(0)]
        c += [S("s_sub_u32", "s29", "s29", 1), S("s_cmp_eq_u32", "s29", 0), branch("s_cbranch_scc1 L_tr")]
        mf = pv_mfmas(0, False)
        for t in range(12):
            c += v_reads("s", j, t, slot=0) + [waitall(False, True)] + mf[5 * t:5 * t + 5]
        c += [barrier(), branch("s_branch L_slow3")]
        P.block("L_slow3", c)


def wo_dma(i, dyn):
    lo = (i % NW2) * WSLOT
    pre = [S("s_add_u32", "m0", "s31", lo)]
    if not dyn:
        pre += [S("s_xor_b32", "s3", "s62", i), S("s_mul_i32", "s32", "s3", 32 * 1280)]
    d = [dma(vWd[p], sWo, "s32", p * 1024, CFG["wo_flags"], tag=("Wo", i), lds=(lo, lo + WSLOT, ("Wo", i))) for p in range(3)]
    return [(pre, d[0], []), ([], d[1], []), ([], d[2], [])]


def obuf(i, qt):
    return R("a", ((2 * (i % NW2) + 1) * 5 + qt) * 4, 4)


def o_head():
    return [S("s_mov_b32", "s29", 5), S("s_mov_b32", "s63", NW2 - 2), S("s_add_u32", "s78", "s84", "s37"), S("s_add_u32", "s50", "s82", 16),
            waitv(("Wo", 0)), barrier()] + sum([wo_reads(0, n) for n in range(3)], [])


def o_pre_w():
    return sum([wo_dma(i, False) for i in range(NW2 - 1)], [])


def o_loads(i, dyn):
    out = [([], vload(obuf(i, qt), vL16, sOL, "s35" if qt < 4 else "s36", qt * 1024 if qt < 4 else 0,
                      CFG["old_flags"], tag=("OL", i)), []) for qt in range(5)]
    if not dyn:
        out[0] = ([S("s_xor_b32", "s3", "s62", i), S("s_mul_i32", "s35", "s3", 10240), S("s_add_u32", "s36", "s35", 4096)], out[0][1], [])
    return out


def wo_reads(i, n, real=True):
    p, T = n >> 1, n & 1
    lo = (i % NW2) * WSLOT
    return [dsread("ds_read_b64_tr_b16", R("a", frag(10 * i + n) + 2 * half, 2), vWr[p & 1], lo + (p >> 1) * 128 + T * 8 + half * 1536,
                   tag=("Wof", i, n), lds=(lo, lo + WSLOT, ("Wo", i) if real else None)) for half in range(2)]


PF = 216


def flag_test(need):
    a = "v%d" % PF
    return [V("v_and_b32", a, a, "v%d" % (PF + 1)), V("v_and_b32", "v%d" % (PF + 2), "v%d" % (PF + 2), "v%d" % (PF + 3)),
            V("v_and_b32", a, a, "v%d" % (PF + 2)), V("v_readfirstlane_b32", "s3", a), S("s_cmp_ge_u32", "s3", need)]


def flag_load(so, tag):
    return vload(R("v", PF, 4), vL16, sFp, so, 0, "sc1", tag=tag)


def o_step(i):
    osig, opoll, nd = int(CFG["osig"]), int(CFG["opoll"]), int(CFG["nd1"])
    mf = []
    for n in range(10):
        p, T = n >> 1, n & 1
        for qt in qorder(n):
            d = R("v", OACC + (qt * 5 + p) * 8 + 4 * T, 4)
            mf.append(mfma(d, R("a", frag(10 * i + n), 4), obuf(i, qt), "0" if i == 0 else d))
    G = Gaps(mf)
    for n in range(10):
        nn = n + 3
        rd = wo_reads(i, nn) if nn < 10 else wo_reads(i + 1, nn - 10, real=(i + 1 < 48))
        G.put_m(5 * n, rd[0])
        G.put_m(5 * n + 1, rd[1])
        G.put_s(5 * n + 4, waitl(("Wof", i, n + 1) if n < 9 else ("Wof", i + 1, 0)))
    G.put_s(34, waitv(("Wo", i + 1), ("OL", i + 1), ("O", 1) if i == osig else None), barrier())
    place_seq(G, 38, 5, wo_dma(i + NW2 - 1, True))
    place_seq(G, 8, 5, o_loads(i + NW2 - 1, True))
    adv = [S("s_add_u32", "s63", "s63", 1), S("s_xor_b32", "s3", "s63", "s62"), S("s_mul_i32", "s32", "s3", 32 * 1280),
           S("s_mul_i32", "s35", "s3", 10240), S("s_add_u32", "s36", "s35", 4096)]
    for k, a in enumerate(adv):
        G.put_s((0, 1, 2, 3, 5)[k], a)
    for k, g in enumerate((3, 33)):
        f = nd + 2 * i + k
        if f < 30:
            assert i < osig
            pre, st, post = o_store(1, f, parked(f))
            G.put_m(g, st)
            if k:
                G.put_s(31, *pre)
            else:
                G.pre += pre
    if i == osig + 1:
        G.put_m(3, vstore(vOne, vL16, sFs, "s84", 0, "sc1", tag="F", op="buffer_store_dword"))
    if i == opoll:
        G.put_m(33, flag_load("s82", "F2"))
    tail = []
    if i == 18:
        t = flag_test(1)
        G.put_s(41, waitv("F2"))
        for k in range(4):
            G.put_v(41 + k, t[k])
        tail = [t[4], branch("s_cbranch_scc0 L_w2")]
    ins = G.flat() + tail
    if i == 0:
        ins = [waitv(("OL", 0)), waitl(("Wof", 0, 0))] + ins
    if "ost" in CFG["dbg"] and i % 6 == 5:
        ins += stamp()
    if i > 18 and i % 6 == 5:
        ins += [S("s_sub_u32", "s29", "s29", 1), S("s_cmp_eq_u32", "s29", 0), branch("s_cbranch_scc1 L_e")]
    if i > 18 and i % 6 == 0:
        ins += [branch("s_branch L_k1")]
    return ins


def final_variant(P, v):
    c = [waitall(), nop(4)]
    for n in range(25):
        if n % 4 == v:
            continue
        s = OACC + 8 * n
        c += [S("s_mov_b32", "s100", v * 102400 + n * 1024)]
        c += [V("v_cvt_pk_bf16_f32", "v%d" % (s + k), "v%d" % (s + 2 * k), "v%d" % (s + 2 * k + 1)) for k in range(4)]
        c += [vstore(R("v", s, 4), vL16, sP, "s100", 0, CFG["pst_flags"], tag="P")]
    c += [S("s_add_u32", "s78", "s85", "s37"), S("s_add_u32", "s50", "s83", 16), S("s_mov_b32", "s87", "0x40000"), waitall(), barrier()]
    c += stamp()
    c += [vstore(vOne, vL16, sFs, "s85", 0, "sc1", tag="F", op="buffer_store_dword")]
    P.block("L_e%d" % v, c, align=6)
    c = [flag_load("s83", "F3"), waitall()] + flag_test(1) + [branch("s_cbranch_scc1 L_f%d" % v), raw("s_sleep 2"),
         S("s_sub_u32", "s87", "s87", 1), S("s_cmp_lg_u32", "s87", 0), branch("s_cbranch_scc1 L_p%d" % v)]
    P.block("L_p%d" % v, c)
    c = stamp()
    keep = [n for n in range(25) if n % 4 == v]
    spare = [OACC + 8 * n + 4 * h for n in range(25) if n % 4 != v for h in range(2)]
    buf = {}
    for n in keep:
        for o in range(4):
            if o != v:
                buf[(n, o)] = spare.pop(0)
                c += [S("s_mov_b32", "s100", o * 102400 + n * 1024),
                      vload(R("v", buf[(n, o)], 4), vL16, sP, "s100", 0, CFG["pld_flags"], tag=("PL", v, n))]
    c += [S("s_mov_b32", "s101", "0xffff0000")]
    for n in keep:
        s = OACC + 8 * n
        c += [waitv(("PL", v, n))]
        for o in range(4):
            if o != v:
                b = buf[(n, o)]
                c += [V("v_lshlrev_b32", "v%d" % (PF + k), 16, "v%d" % (b + k)) for k in range(4)]
                c += [V("v_and_b32", "v%d" % (b + k), "s101", "v%d" % (b + k)) for k in range(4)]
                c += [V("v_add_f32", "v%d" % (s + 2 * k), "v%d" % (s + 2 * k), "v%d" % (PF + k)) for k in range(4)]
                c += [V("v_add_f32", "v%d" % (s + 2 * k + 1), "v%d" % (s + 2 * k + 1), "v%d" % (b + k)) for k in range(4)]
        c += [S("s_mov_b32", "s100", (n // 5) * 16 * 2560 + (n % 5) * 64)]
        c += [V("v_cvt_pk_bf16_f32", "v%d" % (s + k), "v%d" % (s + 2 * k), "v%d" % (s + 2 * k + 1)) for k in range(4)]
        c += [vstore(R("v", s, 4), vX, sOut, "s100", 0, tag="out")]
    if CFG["stamps"]:
        c += [waitall()] + stamp() + [S("s_lshl_b32", "s100", "s2", 3), S("s_add_u32", "s100", "s100", "s28"), S("s_lshl_b32", "s100", "s100", 8),
                                      S("s_add_u32", "s100", "s100", WS_T)] + srd(4, "s90", "s91", "s100", 256) + \
             [V("v_lshrrev_b32", "v16", 2, vL16), vstore(vStamp, "v16", sC, "0", 0, tag="st", op="buffer_store_dword")]
    if CFG.get("enc"):
        a, b = [int(x) for x in CFG["enc"].split(",")]
        c += [S("s_cmp_lg_u32", "s2", int(CFG.get("encwg", 0))), branch("s_cbranch_scc1 L_end"),
              V("v_readlane_b32", "s8", vStamp, 2 * a + 1), V("v_readlane_b32", "s9", vStamp, 2 * b + 1), nop(4),
              S("s_sub_u32", "s8", "s9", "s8"), S("s_lshl_b32", "s8", "s8", 3), S("s_min_u32", "s8", "s8", 400000),
              raw("s_memrealtime s[10:11]"), raw("s_waitcnt lgkmcnt(0)"),
              raw("L_enc%d:" % v), raw("s_sleep 8"), raw("s_memrealtime s[12:13]"), raw("s_waitcnt lgkmcnt(0)"),
              S("s_sub_u32", "s12", "s12", "s10"), S("s_cmp_lt_u32", "s12", "s8"), branch("s_cbranch_scc1 L_enc%d" % v)]
    c += [raw("s_endpgm")]
    P.block("L_f%d" % v, c)


def gen():
    P = Prog("fused")
    pre = q_pre(0)
    c = setup1()
    for a, d, b in pre[:5]:
        c += a + [d] + b
    c += interleave(setup2(), pre[5:])
    P.block("L_setup", c + stamp() + q_head(0))
    cnt_load = vload("v%d" % (TMP + 3), vL16, sC, "0", 0, "sc1", tag="Cp", op="buffer_load_dword")
    cnt_test = [V("v_readfirstlane_b32", "s3", "v%d" % (TMP + 3)), S("s_cmp_ge_u32", "s3", 16)]
    for rnd in range(2):
        P.block("L_q%d" % rnd, q_phase(rnd) + stamp() + ([branch("s_branch L_sm1")] if rnd else []))
        for j in range(-1, 15):
            lab = "L_sm1" if j < 0 else "L_s0" if j == 0 else "L_s%d" % (1 + (j - 1) % 3)
            P.block(lab, a_step(rnd, j), align=(6 if j == 1 else 3 if j < 0 else None))
        P.block("L_t", [o for _, _, o in softmax_sched(15, 120, 200)], align=6)
        P.block("L_tr", a_tail_head(rnd))
        ins, rest = a_tail(rnd)
        extra = {NSH + n: [rest[n]] for n in range(len(rest))}
        if rnd == 0:
            c = ins + stamp() + [S("s_add_u32", "s16", "s16", 4 * 196608), S("s_addc_u32", "s17", "s17", 0),
                                 S("s_add_u32", "s20", "s20", 4 * 196608), S("s_addc_u32", "s21", "s21", 0), S("s_mov_b32", "s30", 1)]
            P.block("L_t0", c + a_epilogue(rnd, extra, q_head(1)))
        else:
            P.block("L_t1", ins + stamp() + [waitv("Cp")] + cnt_test + [branch("s_cbranch_scc0 L_w1")], align=6)
            ol = sum([o_loads(i, False) for i in range(NW2 - 1)], [])
            for k, e in enumerate(ol):
                extra.setdefault(min(5 + k, 29), []).append(e)
            P.block("L_t2", a_epilogue(rnd, extra, o_head()) + stamp())
    for i in range(48):
        lab = "L_o%d" % i if i < 19 else "L_k%d" % (1 + (i - 1) % 6)
        P.block(lab, o_step(i), align=(6 if i == 19 else None))
    P.block("L_e", stamp() + [S("s_cmp_eq_u32", "s80", 1), branch("s_cbranch_scc1 L_e1"), S("s_cmp_eq_u32", "s80", 2), branch("s_cbranch_scc1 L_e2"),
                              S("s_cmp_eq_u32", "s80", 3), branch("s_cbranch_scc1 L_e3")], align=6)
    for v in range(4):
        final_variant(P, v)
    for lab, back, ld, test in (("L_w1", "L_t2", cnt_load, cnt_test), ("L_w2", "L_k1", flag_load("s82", "F2s"), flag_test(1))):
        a, b = spin(lab, back, ld, test)
        P.block(lab, [waitall(True, False)] + a)
        P.block(lab + "_l", b)
    slow_blocks(P)
    P.block("L_end", [raw("s_endpgm")])
    return P


def generate(verbose=False):
    global _sm_plan
    _sm_plan = None
    p = gen()
    n = NAME + "_kernel"
    s = "; Two attention blocks (Q projection, softmax(QK^T)V, output projection) in one persistent kernel.\n"
    s += "; 256 workgroups of 4 waves; each does 2 batches x 2 heads of attention, then a 320x160 output tile over 8 heads.\n"
    s += "; @launch grid=(256,1,1) block=(256,1,1) lds=163840\n"
    s += '.amdgcn_target "amdgcn-amd-amdhsa--gfx950"\n.text\n'
    s += ".globl %s\n.p2align 8\n.type %s,@function\n%s:\n" % (n, n, n)
    s += p.emit()
    if verbose:
        for lab, st in p.stats.items():
            print("%-10s instrs %4d mfma %4d nops %d" % (lab, *st))
    s += '.section .rodata,"a"\n.p2align 6\n'
    s += """.amdhsa_kernel %s
  .amdhsa_next_free_vgpr 512
  .amdhsa_next_free_sgpr 102
  .amdhsa_accum_offset 256
  .amdhsa_group_segment_fixed_size 0
  .amdhsa_kernarg_size 104
  .amdhsa_user_sgpr_count 2
  .amdhsa_user_sgpr_kernarg_segment_ptr 1
  .amdhsa_system_sgpr_workgroup_id_x 1
.end_amdhsa_kernel
""" % n
    return s


if __name__ == "__main__":
    out = sys.argv[1] if len(sys.argv) > 1 else "cdna_kernels/%s.s" % NAME
    for a in sys.argv[2:]:
        k, v = a.split("=")
        CFG[k] = (v == "1") if k == "stamps" else v.replace("+", " ")
    open(out, "w").write(generate(verbose=True))
```
